```python
import torch

def _softmax(x, axis=-1):
    return torch.softmax(x, dim=axis)
def _gelu(x):
    return torch.nn.functional.gelu(x, approximate="tanh")
def _silu(x):
    return torch.nn.functional.silu(x)
def _sigmoid(x):
    return torch.sigmoid(x)
def _layernorm(x, axis=-1, eps=1e-5):
    m = x.mean(dim=axis, keepdim=True)
    v = x.var(dim=axis, keepdim=True, unbiased=False)
    return (x - m) / torch.sqrt(v + eps)
def _scatter_add(tgt, idx, src, axis=0):
    return tgt.clone().index_add_(axis, idx, src)
def _segment_sum(src, seg, n):
    out = torch.zeros((n,) + src.shape[1:], dtype=src.dtype)
    return out.index_add_(0, seg, src)
def _pad(x, pw):
    flat = tuple(v for pair in reversed(pw) for v in pair)
    return torch.nn.functional.pad(x, flat)

kernel_name = 'sequential_preLN__ssm_conv_h3__dense_activation_relu__prompt'

def setup_inputs():

    _w = (lambda a: (lambda t: t.to(torch.bfloat16) if t.is_floating_point() else t)(torch.as_tensor(a)))
    def _A_setup():
        B, S, D = 1, 2048, 512
        ks = 4
        return {
            "q": _w((lambda *s: torch.randn(*s, dtype=torch.bfloat16) * 0.05)(B, S, D)),
            "k": _w((lambda *s: torch.randn(*s, dtype=torch.bfloat16) * 0.4)(B, S, D)),
            "v": _w((lambda *s: torch.randn(*s, dtype=torch.bfloat16) * 0.4)(B, S, D)),
            "shift_k": _w((lambda *s: torch.randn(*s, dtype=torch.bfloat16) * 0.4)(D, ks) * 0.5),
            "ssm_k": _w((lambda *s: torch.randn(*s, dtype=torch.bfloat16) * 0.4)(D, S) * (1.0 / S ** 0.5)),
            "ssm_D": _w((lambda *s: torch.randn(*s, dtype=torch.bfloat16) * 0.4)(D)),
        }
    _A_in = _A_setup()

    def _B_setup():
        B, S, D, Dff = 1, 2048, 512, 1792
        return {
            "x": _w((lambda *s: torch.randn(*s, dtype=torch.bfloat16) * 0.05)(B, S, D)),
            "w1": _w((lambda *s: torch.randn(*s, dtype=torch.bfloat16) * 0.05)(D, Dff)),
            "w2": _w((lambda *s: torch.randn(*s, dtype=torch.bfloat16) * 0.05)(Dff, D)),
        }
    _B_in = _B_setup()

    return {
        "A_q": _A_in["q"],
        "A_k": _A_in["k"],
        "A_v": _A_in["v"],
        "A_shift_k": _A_in["shift_k"],
        "A_ssm_k": _A_in["ssm_k"],
        "A_ssm_D": _A_in["ssm_D"],
        "B_x": _B_in["x"],
        "B_w1": _B_in["w1"],
        "B_w2": _B_in["w2"],
    }

def reference(A_q, A_k, A_v, A_shift_k, A_ssm_k, A_ssm_D, B_x, B_w1, B_w2):
    def _A_ref(q, k, v, shift_k, ssm_k, ssm_D):
        B, S, D = q.shape
        ks = shift_k.shape[-1]
        k_pad = _pad(k, ((0, 0), (ks - 1, 0), (0, 0)))
        k_shift = torch.zeros_like(k)
        for t in range(ks):
            k_shift = k_shift + k_pad[:, t:t + S, :] * shift_k[:, ks - 1 - t][None, None, :]
        kv = k_shift * v
        L = 2 * S
        kv_pad = _pad(kv, ((0, 0), (0, S), (0, 0)))
        kf_pad = _pad(ssm_k, ((0, 0), (0, S)))
        kv_f = (lambda x, axes=(-2,-1): torch.fft.rfft2(x.float(), dim=axes))(kv_pad[:, None, :, :], axes=(1, 2))
        kf_f = (lambda x, axes=(-2,-1): torch.fft.rfft2(x.float(), dim=axes))(kf_pad[:, None, :], axes=(1, 2))
        kf_f = (lambda x, *d: x.permute(*d))(kf_f, 1, 2, 0)
        y_f = kv_f * kf_f[None, :, :, :]
        y = (lambda x, s, axes=(-2,-1): torch.fft.irfft2(x, s=s, dim=axes).to(torch.bfloat16))(y_f, (1, L), axes=(1, 2))[:, 0, :S, :]
        y = y + kv * ssm_D[None, None, :]
        return q * y

    def _B_ref(x, w1, w2):
        h = torch.einsum("bsd,df->bsf", x, w1)
        zero = torch.zeros_like(h)
        h = torch.maximum(h, zero)
        return torch.einsum("bsf,fd->bsd", h, w2)

    x = A_q
    h = x + _A_ref(_layernorm(x, axis=-1), A_k, A_v, A_shift_k, A_ssm_k, A_ssm_D)
    h2 = h + _B_ref(_layernorm(h, axis=-1), B_w1, B_w2)
    return h2
```

```python
import re

TRANS = ('v_exp_f32','v_log_f32','v_rcp_f32','v_rsq_f32','v_sqrt_f32','v_sin_f32','v_cos_f32')

def _regs(tok):
    tok = tok.strip()
    tok = tok.lstrip('-')
    if tok.startswith('abs(') or tok.startswith('|'):
        tok = tok.strip('|').replace('abs(','').rstrip(')')
    m = re.fullmatch(r'([vas])\[(\d+):(\d+)\]', tok)
    if m:
        return [(m.group(1), i) for i in range(int(m.group(2)), int(m.group(3))+1)]
    m = re.fullmatch(r'([vas])(\d+)', tok)
    if m:
        return [(m.group(1), int(m.group(2)))]
    if tok == 'vcc': return [('s','vcc_lo'),('s','vcc_hi')]
    if tok in ('vcc_lo','vcc_hi'): return [('s',tok)]
    if tok == 'exec': return [('s','exec_lo'),('s','exec_hi')]
    if tok == 'm0': return [('s','m0')]
    return []

class Ins:
    def __init__(self, text):
        self.text = text
        t = text.split(';')[0].strip()
        self.is_label = t.endswith(':')
        self.is_dir = t.startswith('.') and not self.is_label
        self.mn = ''
        self.dst = []; self.src = []
        self.kind = 'other'
        self.states = 1
        self.passes = 0
        self.srcC = []; self.srcAB = []
        if self.is_label or self.is_dir or not t:
            self.states = 0
            return
        parts = t.split(None, 1)
        self.mn = mn = parts[0]
        rest = parts[1] if len(parts) > 1 else ''
        ops = [o.strip() for o in re.split(r',(?![^\[]*\])', rest)] if rest else []
        clean = []
        for o in ops:
            clean.append(o.split()[0] if o else o)
        self.mods = rest
        ops = clean
        R = [_regs(o) for o in ops]
        if mn == 's_nop':
            self.states = int(ops[0], 0) + 1; self.kind = 'salu'
        elif mn.startswith('v_mfma'):
            self.kind = 'mfma'
            self.dst = R[0]; self.srcAB = R[1] + R[2]; self.srcC = R[3]
            self.src = self.srcAB + self.srcC
            self.passes = 8 if '32x32x16' in mn else 4
        elif mn.startswith('v_'):
            self.kind = 'valu'
            if mn.startswith('v_cmp'):
                self.dst = R[0]; self.src = sum(R[1:], [])
            elif mn.startswith('v_permlane') and 'swap' in mn:
                self.dst = R[0] + R[1]; self.src = R[0] + R[1]
            elif mn.startswith(('v_fmac','v_dot2c','v_writelane')):
                self.dst = R[0]; self.src = sum(R, [])
            elif mn.startswith(('v_add_co','v_sub_co','v_addc_co')):
                self.dst = R[0] + R[1]; self.src = sum(R[2:], [])
            else:
                self.dst = R[0]; self.src = sum(R[1:], [])
                if mn.startswith('v_cndmask') and len(ops) == 3:
                    self.src += _regs('vcc')
            if '_dpp' in mn or 'quad_perm' in rest or 'row_' in rest or 'wave_' in rest:
                self.dpp = True
                if 'bound_ctrl' not in rest or 'row_mask' in rest:
                    self.src = self.src + self.dst
        elif mn.startswith('ds_'):
            self.kind = 'ds'
            if mn.startswith(('ds_read','ds_bpermute','ds_permute','ds_swizzle')):
                self.dst = R[0]; self.src = sum(R[1:], [])
            else:
                self.src = sum(R, [])
        elif mn.startswith(('buffer_','global_')):
            self.kind = 'vmem'
            lds = bool(re.search(r'\blds\b', rest)) or '_lds_' in mn
            self.lds = lds
            if 'load' in mn and not lds:
                self.dst = R[0]; self.src = sum(R[1:], [])
            else:
                self.src = sum(R, [])
                if lds: self.src += _regs('m0')
            self.wide_store = ('store' in mn) and (mn.endswith('x4') or mn.endswith('x3'))
            if self.wide_store:
                self.sdata = R[0] if mn.startswith('buffer_') else R[1]
        elif mn.startswith('s_'):
            self.kind = 'salu'
            if mn.startswith(('s_cmp','s_cbranch','s_branch','s_waitcnt','s_barrier','s_endpgm','s_setprio','s_sleep','s_bitcmp')):
                self.src = sum(R, [])
            else:
                self.dst = R[0] if R else []
                self.src = sum(R[1:], [])
                if 'saveexec' in mn: self.dst = self.dst + _regs('exec')

def need(prod, cons):
    n = 0
    pd = set(prod.dst); cs = set(cons.src); cd = set(cons.dst)
    if prod.kind == 'valu':
        vd = {r for r in pd if r[0] in 'va'}
        sd = {r for r in pd if r[0] == 's'}
        if cons.kind == 'mfma' and vd & cs: n = max(n, 2)
        if cons.kind == 'valu':
            if (getattr(cons, 'dpp', False) or cons.mn.startswith('v_permlane')) and vd & cs: n = max(n, 2)
            if cons.mn.startswith(('v_readfirstlane','v_readlane')) and vd & cs: n = max(n, 1)
            if prod.mn.replace('_e32','').replace('_e64','') in TRANS and vd & cs: n = max(n, 1)
            if sd & cs: n = max(n, 4 if cons.mn.startswith(('v_readlane','v_writelane')) else 2)
            if ('op_sel' in prod.mods and not prod.mn.startswith('v_pk')) or 'sdwa' in prod.mn:
                if vd & (cs | cd): n = max(n, 1)
        if cons.kind == 'vmem' and sd & cs: n = max(n, 5)
        if cons.kind == 'salu' and sd & cs: n = max(n, 1)
        if ('s','exec_lo') in sd:
            if cons.kind == 'mfma': n = max(n, 4)
            if cons.kind == 'valu': n = max(n, 5 if getattr(cons,'dpp',False) else 4 if cons.mn.startswith(('v_readl','v_readf','v_perml')) else 0)
    if prod.kind == 'mfma':
        big = prod.passes == 8
        if cons.kind == 'mfma':
            if pd & set(cons.srcAB): n = max(n, 12 if big else 8)
            if pd & set(cons.srcC):
                if not (cons.srcC == prod.dst and cons.passes == prod.passes): n = max(n, 10 if big else 6)
            if pd & cd and not (cons.dst == prod.dst and cons.srcC == prod.dst):
                n = max(n, 10 if big else 6)
        elif cons.kind in ('valu','ds','vmem'):
            if pd & (cs | cd): n = max(n, 12 if big else 8)
            if cons.kind == 'valu' and set(prod.srcC) & cd: n = max(n, 7 if big else 3)
    if prod.kind == 'vmem' and getattr(prod, 'wide_store', False):
        if set(prod.sdata) & cd: n = max(n, 2 if cons.kind in ('valu','mfma') else 1)
    if prod.kind == 'salu' and ('s','m0') in pd:
        if cons.kind == 'vmem' and getattr(cons,'lds',False): n = max(n, 1)
    return n

class Asm:
    def __init__(self):
        self.ins = []
        self.uid = 0
    def __call__(self, text):
        for line in text.split('\n'):
            line = line.strip()
            if not line: continue
            self._emit(Ins(line))
    def _required(self, hist, c):
        req = 0; dist = 0
        for p in reversed(hist):
            if dist >= 20: break
            if p.states == 0: continue
            n = need(p, c)
            if n > dist: req = max(req, n - dist)
            dist += p.states
        return req
    def _emit(self, c):
        if c.states and c.kind != 'other':
            req = self._required(self.ins, c)
            while req > 0:
                k = min(req, 16)
                self.ins.append(Ins(f's_nop {k-1}'))
                req -= k
        self.ins.append(c)
    def label(self, base='L'):
        self.uid += 1
        return f'{base}_{self.uid}'
    def mark(self):
        return len(self.ins)
    def close_loop(self, start):
        hist = list(self.ins) + [Ins('s_cbranch_scc1 X')]
        pad = 0
        head = [i for i in self.ins[start:start+40] if i.states]
        d = 0
        cur = list(hist)
        for c in head:
            if d > 20: break
            req = 0; dist = 0
            for p in reversed(cur):
                if dist >= 20: break
                if p.states == 0: continue
                n = need(p, c)
                if n > dist: req = max(req, n - dist)
                dist += p.states
            pad = max(pad, req)
            cur.append(c); d += c.states
        while pad > 0:
            k = min(pad, 16); self.ins.append(Ins(f's_nop {k-1}')); pad -= k
    def text(self):
        out = []
        for i in self.ins:
            out.append(i.text if (i.is_label or i.is_dir) else '    ' + i.text)
        return '\n'.join(out) + '\n'

def vr(b, n=1, p='v'):
    return f'{p}{b}' if n == 1 else f'{p}[{b}:{b+n-1}]'
def ar(b, n=1): return vr(b, n, 'a')
def sr(b, n=1): return vr(b, n, 's')
```

```python
EPOCH = 0
F1 = 0x10000; F1B = 0x18000; F2 = 0x20000; F3 = 0x28000
STATS = 0x50000
STAMP = 0x58000
KVR = 0x100000; XT = 0x300000; HB = 0x500000; H1F = 0x700000
WS_USED = H1F + 64*112*1024
STAMP_NAMES = ['kv_arrived','kv_stored','flag1','flag1b','go1','u_landed','conv_done','h_stored','flag2','go2','g1_done','flag3','go3']
```

```python
import sys
from asmlib import Asm, vr, ar, sr
import layout as L
NAME = 'sequential_preLN__ssm_conv_h3__dense_activation_relu__prompt'
STAMPS = '--stamps' in sys.argv
OUT = [a for a in sys.argv[1:] if not a.startswith('--')][0]

A = Asm()
e = A

WV = 3
sK, sV, sSH, sQ, sSK, sWS, sW1, sW2, sOUT, sHB = 28, 32, 36, 40, 44, 48, 52, 56, 60, 64
G, J = 68, 69
EPO, DPAIR, TAG = 16, 17, 18
RB, CS, RT, CT = 22, 23, 24, 25
SPIN = 19
def srd(r): return f's[{r}:{r+3}]'
stamp_i = [0]
def stamp():
    if STAMPS:
        r = 76 + 2*stamp_i[0]
        assert r + 1 <= 101
        e(f's_memtime s[{r}:{r+1}]')
    stamp_i[0] += 1

W1B = 0; RING = 114688; RINGW = 12288
KPITCH = 4384; KCH = 8*KPITCH
KC0 = 84992; U0 = 155136; UPITCH = 4352
TB1 = U0; TB2 = 0
STG = 20480
SPINMAX = 1 << 16

def mk_srd(r, lo, nrec):
    e(f's_mov_b32 s{r}, s{lo}'); e(f's_mov_b32 s{r+1}, s{lo+1}')
    e(f's_mov_b32 s{r+2}, {nrec}'); e(f's_mov_b32 s{r+3}, 0x20000')

def poll(voffs, tmp):
    lab = e.label('POLL'); done = e.label('PDONE')
    e(f's_mov_b32 s{SPIN}, 0')
    e(f'{lab}:')
    for i, (vo, imm) in enumerate(voffs):
        e(f'buffer_load_dword v{tmp+i}, v{vo}, {srd(sWS)}, {imm} offen sc1')
    e(f's_add_u32 s{SPIN}, s{SPIN}, 1')
    e('s_waitcnt vmcnt(0)')
    for i in range(1, len(voffs)):
        e(f'v_xor_b32 v{tmp+i}, v{tmp}, v{tmp+i}')
    e(f'v_xor_b32 v{tmp}, s{TAG}, v{tmp}')
    for i in range(1, len(voffs)):
        e(f'v_or_b32 v{tmp}, v{tmp}, v{tmp+i}')
    e(f'v_cmp_ne_u32 vcc, 0, v{tmp}')
    e(f's_cbranch_vccz {done}')
    e(f's_cmp_lt_u32 s{SPIN}, {SPINMAX}')
    e(f's_cbranch_scc1 {lab}')
    e(f'{done}:')

def flag_store(soff):
    e(f'v_mov_b32 v250, s{TAG}')
    e('v_mov_b32 v251, 0')
    e('s_mov_b64 exec, 1')
    e(f'buffer_store_dword v250, v251, {srd(sWS)}, s{soff} offen sc1')
    e('s_mov_b64 exec, -1')

def bf16r(dst, src):
    e(f'v_cvt_pk_bf16_f32 v{dst}, v{src}, v{src}')
    e(f'v_and_b32 v{dst}, 0xffff0000, v{dst}')

def unpack(dlo, dhi, src):
    e(f'v_lshlrev_b32 v{dlo}, 16, v{src}')
    e(f'v_and_b32 v{dhi}, 0xffff0000, v{src}')

e(f'{NAME}_kernel:')
e('s_cmp_ge_u32 s2, 256')
e('s_cbranch_scc1 L_END')
e('s_load_dwordx16 s[4:19], s[0:1], 0')
e('s_load_dwordx8 s[20:27], s[0:1], 64')
if STAMPS:
    e('s_memrealtime s[70:71]'); e('s_memtime s[74:75]')
e('v_and_b32 v1, 63, v0')
e('v_lshrrev_b32 v2, 6, v0')
e(f's_and_b32 s{G}, s2, 7')
e(f'v_readfirstlane_b32 s{WV}, v2')
e(f's_lshr_b32 s{J}, s2, 3')
e('v_and_b32 v4, 15, v0')
e('v_lshrrev_b32 v2, 4, v0')
e('v_lshlrev_b32 v2, 12, v2')
e('v_lshl_add_u32 v2, v4, 3, v2')
e(f's_lshl_b32 vcc_lo, s{J}, 16')
e(f's_lshl_b32 vcc_hi, s{G}, 7')
e('s_add_u32 vcc_lo, vcc_lo, vcc_hi')
e('v_add_u32 v2, vcc_lo, v2')
e('v_add_u32 v3, 0xfffff400, v2')
e(f's_lshl_b32 vcc_lo, s{G}, 9')
e('v_lshlrev_b32 v4, 5, v4')
e('v_add_u32 v4, vcc_lo, v4')
e('v_lshlrev_b32 v5, 4, v1')
e(f's_and_b32 vcc_lo, s{WV}, 1')
e('s_lshl_b32 vcc_lo, vcc_lo, 11')
e('v_add_u32 v7, vcc_lo, v5')
e('v_add_u32 v6, -16, v7')
e('s_waitcnt lgkmcnt(0)')
mk_srd(sSH, 10, 4096); mk_srd(sK, 6, 2097152); mk_srd(sV, 8, 2097152)
SH, K, V, X, XR, SKW = 8, 16, 30, 38, 46, 56
e(f'buffer_load_dwordx4 v[{SH}:{SH+3}], v4, {srd(sSH)}, 0 offen')
e(f'buffer_load_dwordx4 v[{SH+4}:{SH+7}], v4, {srd(sSH)}, 0 offen offset:16')
for i in range(4): e(f'buffer_load_dwordx2 v[{K+6+2*i}:{K+7+2*i}], v2, {srd(sK)}, 0 offen offset:{1024*i}')
for i in range(4): e(f'buffer_load_dwordx2 v[{V+2*i}:{V+1+2*i}], v2, {srd(sV)}, 0 offen offset:{1024*i}')
for i in range(3): e(f'buffer_load_dwordx2 v[{K+2*i}:{K+1+2*i}], v3, {srd(sK)}, 0 offen offset:{1024*i}')
mk_srd(sQ, 4, 2097152)
for i in range(4): e(f'buffer_load_dwordx2 v[{X+2*i}:{X+1+2*i}], v2, {srd(sQ)}, 0 offen offset:{1024*i}')
e('s_lshl_b32 s4, s2, 13'); e(f's_lshl_b32 s5, s{WV}, 11'); e('s_add_u32 s4, s4, s5')
for i in range(2): e(f'buffer_load_dwordx4 v[{XR+4*i}:{XR+3+4*i}], v5, {srd(sQ)}, s4 offen offset:{1024*i}')
e(f's_lshl_b32 s4, s{G}, 6'); e(f's_lshl_b32 s5, s{J}, 1'); e('s_add_u32 s4, s4, s5')
e('s_lshl_b32 s6, s4, 1')
e(f's_load_dword s{DPAIR}, s[14:15], s6')
e(f's_load_dword s{EPO}, s[26:27], {L.EPOCH}')
e(f's_lshr_b32 s5, s{WV}, 1'); e('s_add_u32 s7, s4, s5')
e('s_lshl_b32 s5, s7, 12')
e(f's_add_u32 s{sSK}, s12, s5'); e(f's_addc_u32 s{sSK+1}, s13, 0'); e(f's_mov_b32 s{sSK+2}, 4096'); e(f's_mov_b32 s{sSK+3}, 0x20000')
e(f'buffer_load_dwordx4 v[{SKW}:{SKW+3}], v6, {srd(sSK)}, 0 offen')
e(f'buffer_load_dwordx4 v[{SKW+4}:{SKW+7}], v7, {srd(sSK)}, 0 offen')
e(f'buffer_load_dwordx4 v[{SKW+8}:{SKW+11}], v7, {srd(sSK)}, 0 offen offset:1008')
e(f'buffer_load_dwordx4 v[{SKW+12}:{SKW+15}], v7, {srd(sSK)}, 0 offen offset:1024')
e('s_getpc_b64 s[8:9]')
e('v_lshlrev_b32 v240, 7, v0')
e('global_load_dword v241, v240, s[8:9]')
NVM_AFTER_KV = 4 + 2 + 4 + 1
mk_srd(sWS, 26, L.WS_USED); mk_srd(sW1, 18, 512*1792*2); mk_srd(sW2, 20, 512*1792*2); mk_srd(sOUT, 22, 2097152)
e(f's_lshl_b32 s{RB}, s{G}, 1'); e(f's_and_b32 s5, s{J}, 1'); e(f's_add_u32 s{RB}, s{RB}, s5'); e(f's_lshr_b32 s{CS}, s2, 4')
e(f's_lshl_b32 s{RT}, s{G}, 2'); e(f's_and_b32 s5, s{J}, 3'); e(f's_add_u32 s{RT}, s{RT}, s5'); e(f's_lshr_b32 s{CT}, s2, 5')
e(f's_lshl_b32 s5, s{RB}, 2'); e(f's_add_u32 s5, s5, s{WV}'); e('s_lshl_b32 s5, s5, 15'); e(f's_add_u32 s5, s5, {L.HB}')
e(f's_add_u32 s{sHB}, s26, s5'); e(f's_addc_u32 s{sHB+1}, s27, 0'); e(f's_mov_b32 s{sHB+2}, 32768'); e(f's_mov_b32 s{sHB+3}, 0x20000')
e('v_and_b32 v242, 15, v0')
e('v_lshrrev_b32 v243, 4, v0')
e('v_and_b32 v244, 7, v0'); e('v_lshlrev_b32 v244, 1, v244')
e('v_xor_b32 v245, v243, v244')
e('v_lshlrev_b32 v246, 9, v242')
e(f'v_lshl_add_u32 v247, v245, 3, v246')
e('v_xor_b32 v245, 15, v245')
e(f'v_lshl_add_u32 v246, v245, 3, v246')
e(f'v_add_u32 v246, {TB1}, v246')
e('v_lshrrev_b32 v243, 5, v0'); e('v_and_b32 v244, 7, v0'); e('v_xor_b32 v243, v243, v244')
e('v_lshrrev_b32 v245, 3, v0')
e('v_lshlrev_b32 v248, 7, v245'); e('v_lshl_add_u32 v248, v243, 4, v248')
e(f'v_add_u32 v252, {TB1}, v248')
e('v_lshlrev_b32 v249, 12, v245'); e('v_lshl_add_u32 v249, v244, 4, v249')
e(f's_lshl_b32 s4, s{G}, 18')
e(f's_lshl_b32 s5, s{J}, 7')
e(f's_add_u32 s10, s4, {L.XT}'); e('s_add_u32 s10, s10, s5'); e('s_add_u32 s11, s10, 131072')
e(f's_add_u32 s8, s4, {L.KVR + 4096 - 128}'); e('s_sub_u32 s8, s8, s5'); e('s_add_u32 s9, s8, 131072')
WP, KF, VF, ACC, PK = 72, 88, 116, 132, 148
e(f's_waitcnt vmcnt({NVM_AFTER_KV + 11})')
for cp in range(2):
    for hf in range(2):
        d0 = SH + 4*cp + 2*hf
        unpack(WP + 0 + 2*cp + hf, WP + 4 + 2*cp + hf, d0)
        unpack(WP + 8 + 2*cp + hf, WP + 12 + 2*cp + hf, d0 + 1)
e(f's_waitcnt vmcnt({NVM_AFTER_KV + 7})')
for i in range(3, 7):
    for cp in range(2): unpack(KF + 4*i + 2*cp, KF + 4*i + 2*cp + 1, K + 2*i + cp)
e(f's_waitcnt vmcnt({NVM_AFTER_KV + 3})')
for o in range(4):
    for cp in range(2): unpack(VF + 4*o + 2*cp, VF + 4*o + 2*cp + 1, V + 2*o + cp)
e(f's_waitcnt vmcnt({NVM_AFTER_KV})')
stamp()
for i in range(3):
    for cp in range(2): unpack(KF + 4*i + 2*cp, KF + 4*i + 2*cp + 1, K + 2*i + cp)
def p2(b): return f'v[{b}:{b+1}]'
for t in range(4):
    for o in range(4):
        for cp in range(2):
            acc = ACC + 4*o + 2*cp; kf = KF + 4*(o + 3 - t) + 2*cp; w = WP + 4*t + 2*cp
            if t == 0: e(f'v_pk_mul_f32 {p2(acc)}, {p2(kf)}, {p2(w)}')
            else: e(f'v_pk_fma_f32 {p2(acc)}, {p2(kf)}, {p2(w)}, {p2(acc)}')
for o in range(4):
    for cp in range(2): e(f'v_pk_mul_f32 {p2(ACC+4*o+2*cp)}, {p2(ACC+4*o+2*cp)}, {p2(VF+4*o+2*cp)}')
for i in range(4):
    e(f'v_cvt_pk_bf16_f32 v{PK+2*i}, v{ACC+12+i}, v{ACC+8+i}')
    e(f'v_cvt_pk_bf16_f32 v{PK+2*i+1}, v{ACC+4+i}, v{ACC+i}')
    e(f'ds_write_b64 v246, {p2(PK+2*i)} offset:{128*i}')
e('s_waitcnt lgkmcnt(0)')
e('s_barrier')
e(f'ds_read_b128 v[156:159], v252')
e(f'ds_read_b128 v[160:163], v252 offset:4096')
e(f's_mul_i32 s{TAG}, s{EPO}, 1664525'); e(f's_add_u32 s{TAG}, s{TAG}, 1013904223')
e('s_mov_b32 s4, 0x05040100'); e('s_mov_b32 s5, 0x07060302')
e('s_waitcnt lgkmcnt(1)')
e(f'buffer_store_dwordx4 v[156:159], v249, {srd(sWS)}, s8 offen sc1')
e('s_waitcnt lgkmcnt(0)')
e(f'buffer_store_dwordx4 v[160:163], v249, {srd(sWS)}, s9 offen sc1')
stamp()
e('s_waitcnt vmcnt(9)')
for cp in range(2):
    for hf in range(2):
        i = 2*cp + hf
        e(f'v_perm_b32 v{PK+2*i}, v{X+2+cp}, v{X+cp}, s{4+hf}')
        e(f'v_perm_b32 v{PK+2*i+1}, v{X+6+cp}, v{X+4+cp}, s{4+hf}')
        e(f'ds_write_b64 v247, {p2(PK+2*i)} offset:{TB2+128*i}')
e('s_waitcnt vmcnt(7)')
F = 88
for r in range(2):
    for i in range(4): unpack(F + 8*r + 2*i, F + 8*r + 2*i + 1, XR + 4*r + i)
SM = 104
def wave_allreduce(regs, tmp):
    for mode in ('quad_perm:[1,0,3,2]', 'quad_perm:[2,3,0,1]', 'row_half_mirror', 'row_mirror'):
        for r in regs: e(f'v_add_f32_dpp v{r}, v{r}, v{r} {mode} row_mask:0xf bank_mask:0xf')
    for sw in ('v_permlane16_swap_b32', 'v_permlane32_swap_b32'):
        for i, r in enumerate(regs): e(f'v_mov_b32 v{tmp+i}, v{r}')
        for i, r in enumerate(regs): e(f'{sw} v{r}, v{tmp+i}')
        for i, r in enumerate(regs): e(f'v_add_f32 v{r}, v{r}, v{tmp+i}')
for r in range(2):
    b = F + 8*r
    e(f'v_pk_add_f32 {p2(106+4*r)}, {p2(b)}, {p2(b+2)}'); e(f'v_pk_add_f32 {p2(108+4*r)}, {p2(b+4)}, {p2(b+6)}')
for r in range(2): e(f'v_pk_add_f32 {p2(106+4*r)}, {p2(106+4*r)}, {p2(108+4*r)}')
for r in range(2): e(f'v_add_f32 v{SM+r}, v{106+4*r}, v{107+4*r}')
wave_allreduce([SM, SM+1], 106)
for r in range(2): e(f'v_mul_f32 v{SM+r}, 0x3b000000, v{SM+r}')
for r in range(2):
    for i in range(8): e(f'v_sub_f32 v{F+8*r+i}, v{F+8*r+i}, v{SM+r}')
for r in range(2): e(f'v_mul_f32 v{110+r}, v{F+8*r}, v{F+8*r}')
for i in range(1, 8):
    for r in range(2): e(f'v_fmac_f32 v{110+r}, v{F+8*r+i}, v{F+8*r+i}')
wave_allreduce([110, 111], 106)
def ln_finish(mean, var, n):
    for r in range(n): bf16r(mean + r, mean + r)
    for r in range(n): bf16r(var + r, var + r)
    for r in range(n): e(f'v_add_f32 v{var+r}, 0x3727c5ac, v{var+r}')
    for r in range(n): bf16r(var + r, var + r)
    for r in range(n): e(f'v_sqrt_f32 v{var+r}, v{var+r}')
    for r in range(n): bf16r(var + r, var + r)
    for r in range(n): e(f'v_rcp_f32 v{var+r}, v{var+r}')
for r in range(2): e(f'v_mul_f32 v{110+r}, 0x3b000000, v{110+r}')
ln_finish(SM, 110, 2)
for r in range(2): e(f'v_mul_f32 v{112+r}, v{SM+r}, -v{110+r}')
e('v_cmp_eq_u32 vcc, 1, v1')
e('v_cndmask_b32 v110, v110, v112, vcc'); e('v_cndmask_b32 v111, v111, v113, vcc')
e('s_waitcnt vmcnt(0) lgkmcnt(0)')
e('s_barrier')
e(f's_cmp_lg_u32 s{WV}, 0')
lab = e.label('NF'); e(f's_cbranch_scc1 {lab}')
e('s_lshl_b32 s4, s2, 7'); e(f's_add_u32 s4, s4, {L.F1}')
flag_store(4)
e(f'{lab}:')
stamp()
e(f'ds_read_b128 v[156:159], v248 offset:{TB2}')
e(f'ds_read_b128 v[160:163], v248 offset:{TB2+4096}')
e('s_lshl_b32 s4, s2, 6'); e(f's_lshr_b32 s5, s{WV}, 1'); e('s_lshl_b32 s5, s5, 5'); e('s_add_u32 s4, s4, s5')
e(f's_and_b32 s5, s{WV}, 1'); e('s_lshl_b32 s5, s5, 3'); e('s_add_u32 s4, s4, s5'); e(f's_add_u32 s4, s4, {L.STATS}')
e('s_mov_b64 exec, 3')
e(f'buffer_store_dwordx2 v[110:111], v5, {srd(sWS)}, s4 offen sc1')
e('s_mov_b64 exec, -1')
e('s_waitcnt lgkmcnt(1)')
e(f'buffer_store_dwordx4 v[156:159], v249, {srd(sWS)}, s10 offen sc1')
e('s_waitcnt lgkmcnt(0)')
e(f'buffer_store_dwordx4 v[160:163], v249, {srd(sWS)}, s11 offen sc1')
e(f's_lshr_b32 s4, s{WV}, 1'); e(f's_mul_i32 s5, s4, {KCH}'); e(f's_add_u32 s5, s5, {KC0}')
e(f'v_add_u32 v8, s5, v7')
for i in range(2):
    W = SKW + 8*i; O = 88; O2 = 96; M = 104
    for n in range(6): e(f'v_alignbit_b32 v{O+n}, v{W+n+1}, v{W+n}, 16')
    for n in range(6): e(f'v_alignbit_b32 v{O2+n}, v{W+n+2}, v{W+n+1}, 16')
    for n in range(6): e(f'v_mov_b32 v{M+n}, v{W+n+1}')
    src = {1: O, 2: M, 3: O2, 4: W+2, 5: O+2, 6: M+2, 7: O2+2, 8: W+4}
    for sh in range(1, 9):
        e(f'ds_write_b128 v8, v[{src[sh]}:{src[sh]+3}] offset:{(sh-1)*KPITCH + 256 + 1024*i}')
    if i == 0: e('s_waitcnt lgkmcnt(0)')
for n in range(4): e(f'v_mov_b32 v{12+n}, 0')
e('v_lshrrev_b32 v9, 4, v0'); e(f's_movk_i32 s4, {KPITCH}'); e('v_and_b32 v10, 15, v0'); e('v_lshlrev_b32 v10, 4, v10')
e('v_mad_u32_u24 v9, v9, s4, v10')
e(f'v_add_u32 v9, {KC0}, v9')
e('ds_write_b128 v9, v[12:15]')
e(f'v_add_u32 v9, {U0 + 4096}, v10')
e('s_mov_b64 exec, 0xffff')
e('ds_write_b128 v9, v[12:15]'); e(f'ds_write_b128 v9, v[12:15] offset:{UPITCH}')
e('s_mov_b64 exec, -1')
e('s_waitcnt vmcnt(0) lgkmcnt(0)')
e('s_barrier')
e(f's_cmp_lg_u32 s{WV}, 0')
lab = e.label('NF'); e(f's_cbranch_scc1 {lab}')
e('s_lshl_b32 s4, s2, 7'); e(f's_add_u32 s4, s4, {L.F1B}')
flag_store(4)
e(f'{lab}:')
stamp()

def w2_setup():
    e('v_lshrrev_b32 v20, 3, v1'); e('v_lshlrev_b32 v20, 10, v20')
    e('v_bfe_u32 v21, v1, 4, 1'); e('v_lshlrev_b32 v21, 2, v21'); e('v_and_b32 v22, 7, v1'); e('v_xor_b32 v21, v21, v22')
    e('v_lshl_add_u32 v20, v21, 4, v20')
    e('v_lshrrev_b32 v21, 5, v1'); e('v_lshlrev_b32 v21, 3, v21'); e('v_bfe_u32 v22, v1, 2, 2'); e('v_add_u32 v21, v21, v22')
    e('v_lshlrev_b32 v21, 7, v21')
    e('v_bfe_u32 v22, v1, 4, 1'); e('v_lshl_add_u32 v21, v22, 5, v21')
    e('v_and_b32 v22, 3, v1'); e('v_lshl_add_u32 v21, v22, 3, v21')
    e('v_bfe_u32 v22, v1, 3, 1'); e('v_lshl_add_u32 v21, v22, 6, v21')
    e(f's_mul_i32 s12, s{WV}, {STG}')
    e('v_add_u32 v21, s12, v21')
    e('v_xor_b32 v22, 64, v21')
    e(f's_mul_i32 s13, s{WV}, {448*1024}'); e(f's_lshl_b32 s4, s{CT}, 7'); e('s_add_u32 s13, s13, s4')
def w2_dma(ks0, n):
    for k in range(n):
        for h in range(2):
            e(f's_add_u32 s4, s12, {2048*k + 1024*h}'); e('s_mov_b32 m0, s4')
            e(f's_add_u32 s5, s13, {(16*(ks0+k) + 8*h)*1024}')
            e(f'buffer_load_dwordx4 v20, {srd(sW2)}, s5 offen lds')
def w2_read(ks0, n):
    for k in range(n):
        for dt in range(2):
            for x in range(2):
                a = 8*(ks0+k) + 4*dt + 2*x
                e(f'ds_read_b64_tr_b16 a[{a}:{a+1}], v{21+dt} offset:{2048*k + 512*x}')
        if k % 3 == 2: e('s_waitcnt lgkmcnt(0)')
    e('s_waitcnt lgkmcnt(0)')
w2_setup()
for ks0, n in ((0, 10), (10, 10), (20, 8)):
    w2_dma(ks0, n); e('s_waitcnt vmcnt(0)'); w2_read(ks0, n)

e('v_and_b32 v24, 31, v1'); e('v_lshlrev_b32 v24, 10, v24')
e(f's_lshl_b32 s4, s{G}, 7'); e(f's_add_u32 s4, s4, {L.F1}'); e('v_add_u32 v24, s4, v24')
poll([(24, 0)], 25)
stamp()
e('s_lshl_b32 s4, s7, 12'); e(f's_and_b32 s5, s{WV}, 1'); e('s_lshl_b32 s5, s5, 11'); e('s_add_u32 s4, s4, s5'); e(f's_add_u32 s4, s4, {L.KVR}')
e(f's_lshr_b32 s6, s{WV}, 1'); e(f's_mul_i32 s6, s6, {UPITCH}'); e(f's_add_u32 s6, s6, {U0}')
e('s_add_u32 s5, s5, s6'); e('s_mov_b32 m0, s5')
e(f'buffer_load_dwordx4 v5, {srd(sWS)}, s4 offen sc1 lds')
e(f'buffer_load_dwordx4 v5, {srd(sWS)}, s4 offen offset:1024 sc1 lds')
e('v_and_b32 v8, 15, v1'); e('v_lshrrev_b32 v9, 4, v1')
e('v_and_b32 v10, 7, v1'); e(f's_movk_i32 s4, {KPITCH}'); e('v_mul_u32_u24 v10, s4, v10')
e('v_bfe_u32 v11, v1, 3, 1'); e('v_lshl_add_u32 v10, v11, 8, v10')
e('v_lshlrev_b32 v11, 4, v9'); e('v_sub_u32 v10, v10, v11')
e(f's_lshr_b32 s4, s{WV}, 1'); e(f's_mul_i32 s5, s4, {KCH}'); e(f's_add_u32 s5, s5, {KC0 + 48}')
e('v_add_u32 v10, s5, v10')
e('v_add_u32 v11, v8, v9'); e('v_lshlrev_b32 v11, 4, v11'); e('s_add_u32 s5, s6, 288'); e('v_sub_u32 v11, s5, v11')
e('v_lshrrev_b32 v12, 5, v1'); e('v_lshlrev_b32 v12, 7, v12'); e('v_lshl_add_u32 v12, v8, 3, v12')
e('v_bfe_u32 v13, v1, 4, 1'); e('v_lshl_add_u32 v12, v13, 2, v12')
e('v_lshlrev_b32 v13, 1, v12')
e('v_lshlrev_b32 v14, 3, v12')
e('s_add_u32 s5, s6, 4088 - 3584'); e('v_sub_u32 v15, s5, v13')
e('v_lshlrev_b32 v16, 7, v1'); e(f'v_add_u32 v16, {L.F1B}, v16')
e('s_waitcnt vmcnt(0)')
e('s_barrier')
stamp()
CACC = 32; FB = 64
def conv_role(tiles, nf):
    pairs = [(a, b - a, ti) for ti, b in enumerate(tiles) for a in range(b + 1)]
    pairs.sort(key=lambda p: (max(p[0], p[1]), p[0]))
    def reads(st, off):
        r = []
        for i in range(nf):
            r.append(f'ds_read_b128 v[{FB+64*st+4*i}:{FB+64*st+4*i+3}], v10 offset:{512*i + off}')
            r.append(f'ds_read_b128 v[{FB+64*st+32+4*i}:{FB+64*st+32+4*i+3}], v11 offset:{512*(7-i) + off}')
        return r
    for ti in range(4):
        for r in range(4): e(f'v_mov_b32 v{CACC+4*ti+r}, 0')
    rd = reads(0, 0)
    for i, r in enumerate(rd):
        e(r)
        if i == 11: e('s_waitcnt lgkmcnt(4)')
    e('s_mov_b32 s4, 0')
    lab = e.label('CONV'); e(f'{lab}:'); m = e.mark()
    for st in range(2):
        e('s_waitcnt lgkmcnt(0)')
        rd = reads(1 - st, 64*(st + 1))
        for i, (a, c, ti) in enumerate(pairs):
            ka = FB + 64*st + 4*a; uc = FB + 64*st + 32 + 4*c; ac = CACC + 4*ti
            e(f'v_mfma_f32_16x16x32_bf16 v[{ac}:{ac+3}], v[{ka}:{ka+3}], v[{uc}:{uc+3}], v[{ac}:{ac+3}]')
            for _ in range(2 if i < 4 else 1):
                if rd: e(rd.pop(0))
        assert not rd
    e('v_add_u32 v10, 128, v10'); e('v_add_u32 v11, 128, v11')
    e('s_add_u32 s4, s4, 1'); e('s_cmp_lt_u32 s4, 4')
    e.close_loop(m)
    e(f's_cbranch_scc1 {lab}')
e(f's_and_b32 s4, s{WV}, 1'); e('s_cmp_eq_u32 s4, 1'); e('s_cbranch_scc1 L_ROLEB')
conv_role([0, 1, 6, 7], 8)
e('s_mov_b32 s8, 0'); e('s_mov_b32 s9, 6')
e('s_branch L_CONVDONE')
e('L_ROLEB:')
conv_role([2, 3, 4, 5], 6)
e('s_mov_b32 s8, 2'); e('s_mov_b32 s9, 4')
e('L_CONVDONE:')
e('s_waitcnt lgkmcnt(0)')
stamp()
e('s_movk_i32 s4, 0x2000'); e('s_movk_i32 s5, 0x4000'); e('s_movk_i32 s10, 0x6000')
poll([(16, 0), (16, 's4'), (16, 's5'), (16, 's10')], 25)
EX, EST, EKV = 64, 72, 104
e('s_lshl_b32 s10, s7, 12'); e(f's_add_u32 s10, s10, {L.XT}')
for pi in range(2):
    e(f's_lshl_b32 s4, s{8+pi}, 9'); e('s_add_u32 s5, s4, s10')
    e(f's_lshl_b32 s11, s{8+pi}, 11'); e(f's_add_u32 s11, s11, {L.STATS}')
    e(f's_sub_u32 s4, 3072, s4'); e('v_add_u32 v17, s4, v15')
    for tt in range(2):
        ti = 2*pi + tt
        e(f'buffer_load_dwordx2 v[{EX+2*ti}:{EX+2*ti+1}], v13, {srd(sWS)}, s5 offen offset:{512*tt} sc1')
        e(f'buffer_load_dwordx4 v[{EST+8*ti}:{EST+8*ti+3}], v14, {srd(sWS)}, s11 offen offset:{2048*tt} sc1')
        e(f'buffer_load_dwordx4 v[{EST+8*ti+4}:{EST+8*ti+7}], v14, {srd(sWS)}, s11 offen offset:{2048*tt+16} sc1')
        e(f'ds_read_b64 v[{EKV+2*ti}:{EKV+2*ti+1}], v17 offset:{512*(1-tt)}')
e(f's_lshr_b32 s4, s{WV}, 1'); e('s_lshl_b32 s4, s4, 4'); e(f's_lshr_b32 s4, s{DPAIR}, s4'); e('s_lshl_b32 s4, s4, 16'); e('s_mov_b32 s5, s4')
e('v_bfe_u32 v17, v1, 4, 1'); e('v_lshlrev_b32 v17, 3, v17'); e('v_lshrrev_b32 v18, 5, v1'); e('v_lshl_add_u32 v17, v18, 2, v17')
e('v_bfe_u32 v18, v1, 2, 2'); e('v_add_u32 v17, v17, v18'); e('v_lshlrev_b32 v17, 15, v17')
e('v_and_b32 v18, 3, v1'); e('v_lshl_add_u32 v17, v18, 4, v17')
e('s_lshl_b32 s10, s7, 6'); e(f's_add_u32 s10, s10, {L.HB}')
e('s_waitcnt lgkmcnt(0)')
T0 = 112; HP = 128
for ti in range(4):
    ac = CACC + 4*ti
    unpack(T0+1, T0, EKV+2*ti+1); unpack(T0+3, T0+2, EKV+2*ti)
    e(f'v_pk_fma_f32 {p2(ac)}, {p2(T0)}, s[4:5], {p2(ac)}'); e(f'v_pk_fma_f32 {p2(ac+2)}, {p2(T0+2)}, s[4:5], {p2(ac+2)}')
for ti in range(4):
    ac = CACC + 4*ti
    e(f's_waitcnt vmcnt({3*(3-ti) + (1 if ti >= 2 else 0)})')
    unpack(T0, T0+1, EX+2*ti); unpack(T0+2, T0+3, EX+2*ti+1)
    for hh in range(2):
        e(f'v_pk_fma_f32 {p2(T0+4+2*hh)}, {p2(T0+2*hh)}, {p2(EST+8*ti+2*hh)}, {p2(EST+8*ti+4+2*hh)}')
    for hh in range(2):
        e(f'v_pk_fma_f32 {p2(T0+4+2*hh)}, {p2(T0+4+2*hh)}, {p2(ac+2*hh)}, {p2(T0+2*hh)}')
    for hh in range(2):
        e(f'v_cvt_pk_bf16_f32 v{HP+2*ti+hh}, v{T0+4+2*hh}, v{T0+5+2*hh}')
    if ti & 1:
        b = HP + 2*(ti - 1)
        e(f'v_permlane16_swap_b32 v{b}, v{b+2}'); e(f'v_permlane16_swap_b32 v{b+1}, v{b+3}')
        e(f's_lshl_b32 s11, s{8 + ti//2}, 18'); e('s_add_u32 s11, s11, s10')
        e(f'buffer_store_dwordx4 v[{b}:{b+3}], v17, {srd(sWS)}, s11 offen sc1')
stamp()
e('s_waitcnt vmcnt(0)')
e('s_barrier')
e(f's_cmp_lg_u32 s{WV}, 0')
lab = e.label('NF'); e(f's_cbranch_scc1 {lab}')
e('s_lshl_b32 s4, s2, 7'); e(f's_add_u32 s4, s4, {L.F2}')
flag_store(4)
e(f'{lab}:')
stamp()

e('s_movk_i32 s4, 4682')
e('s_movk_i32 s5, 3360')
for i in range(7):
    e(f'v_add_u32 v{24+i}, {64*i}, v1')
    e(f'v_mul_u32_u24 v31, s4, v{24+i}'); e('v_lshrrev_b32 v31, 16, v31')
    e(f'v_lshlrev_b32 v{24+i}, 4, v{24+i}'); e(f'v_mad_u32_u24 v{24+i}, v31, s5, v{24+i}')
e(f's_mul_i32 s8, s{WV}, {128*3584}'); e(f's_mul_i32 s9, s{CS}, 224'); e('s_add_u32 s8, s8, s9')
e(f's_mul_i32 s9, s{WV}, {128*224}')
e('s_mov_b32 s10, 0')
lab = e.label('W1L'); e(f'{lab}:')
for i in range(7):
    e(f's_add_u32 s4, s9, {1024*i}'); e('s_mov_b32 m0, s4')
    e(f'buffer_load_dwordx4 v{24+i}, {srd(sW1)}, s8 offen lds')
e(f's_add_u32 s8, s8, {32*3584}'); e('s_add_u32 s9, s9, 7168'); e('s_add_u32 s10, s10, 1'); e('s_cmp_lt_u32 s10, 4')
e(f's_cbranch_scc1 {lab}')
ACC1, S1, S2, ONES, FR, C1 = 64, 120, 128, 136, 140, 212
vW, vH0, vH1, vHD, vHb = 8, 9, 10, 11, 12
e('v_lshrrev_b32 v13, 2, v1'); e('s_movk_i32 s4, 224'); e('v_mul_u32_u24 v8, s4, v13'); e('v_and_b32 v14, 3, v1'); e('v_lshl_add_u32 v8, v14, 3, v8')
e('v_lshlrev_b32 v12, 6, v13'); e('v_lshl_add_u32 v12, v14, 3, v12'); e('v_bfe_u32 v15, v1, 4, 1'); e('v_lshlrev_b32 v15, 5, v15'); e('v_xor_b32 v12, v12, v15')
e(f's_mul_i32 s12, s{WV}, {RINGW}'); e(f's_add_u32 s12, s12, {RING}')
e('v_add_u32 v12, s12, v12')
e(f'v_xor_b32 v11, v5, v15')
for r in range(4): e(f'v_mov_b32 v{ONES+r}, 0x3f803f80')
e(f's_mul_i32 s4, s{WV}, {4*7168}'); e('v_add_u32 v13, s4, v8')
e('s_waitcnt vmcnt(0)')
for ks in range(4):
    for t in range(7):
        for x in range(2):
            e(f'ds_read_b64_tr_b16 v[{FR+4*t+2*x}:{FR+4*t+2*x+1}], v13 offset:{7168*ks + 3584*x + 32*t}')
    e('s_waitcnt lgkmcnt(0)')
    for t in range(7):
        c = '0' if ks == 0 else f'v[{C1+4*t}:{C1+4*t+3}]'
        e(f'v_mfma_f32_16x16x32_bf16 v[{C1+4*t}:{C1+4*t+3}], v[{FR+4*t}:{FR+4*t+3}], v[{ONES}:{ONES+3}], {c}')
e('v_lshrrev_b32 v13, 4, v1'); e('v_lshlrev_b32 v13, 4, v13'); e(f'v_add_u32 v13, {RING}, v13')
e(f's_mul_i32 s4, s{WV}, 448'); e('v_add_u32 v14, s4, v13')
e('s_mov_b32 s4, 0x00010001'); e('s_mov_b32 s5, 0x00010001'); e('s_mov_b64 exec, s[4:5]')
for t in range(7): e(f'ds_write_b128 v14, v[{C1+4*t}:{C1+4*t+3}] offset:{64*t}')
e('s_mov_b64 exec, -1')
e('s_waitcnt lgkmcnt(0)')
e('s_barrier')
for w in range(4):
    dst = C1 if w == 0 else FR
    for t in range(7): e(f'ds_read_b128 v[{dst+4*t}:{dst+4*t+3}], v13 offset:{448*w + 64*t}')
    e('s_waitcnt lgkmcnt(0)')
    if w:
        for r in range(0, 28, 2): e(f'v_pk_add_f32 {p2(C1+r)}, {p2(C1+r)}, {p2(FR+r)}')
e('s_barrier')
e('v_lshlrev_b32 v16, 7, v1'); e(f'v_add_u32 v16, {L.F2}, v16')
e('s_movk_i32 s4, 0x2000'); e('s_movk_i32 s5, 0x4000'); e('s_movk_i32 s10, 0x6000')
poll([(16, 0), (16, 's4'), (16, 's5'), (16, 's10')], 25)
stamp()
for i in range(6):
    e(f's_add_u32 s4, s12, {2048*i}'); e('s_mov_b32 m0, s4'); e(f's_movk_i32 s5, {2048*i}')
    e(f'buffer_load_dwordx4 v{vHD}, {srd(sHB)}, s5 offen sc1 lds')
    e(f'buffer_load_dwordx4 v{vHD}, {srd(sHB)}, s5 offen offset:1024 sc1 lds')
e(f's_or_b32 s4, s2, s{WV}'); e('s_cmp_lg_u32 s4, 0')
lab = e.label('NE'); e(f's_cbranch_scc1 {lab}')
e(f's_mov_b32 s4, {L.EPOCH}')
flag_store(4)
e('s_waitcnt vmcnt(0)')
e(f'{lab}:')
for r in range(ACC1, S2 + 8): e(f'v_mov_b32 v{r}, 0')
def g1_wreads(st, off):
    return [f'ds_read_b64_tr_b16 v[{FR+36*st+8+4*t+2*x}:{FR+36*st+8+4*t+2*x+1}], v{vW} offset:{off + 3584*x + 32*t}' for t in range(7) for x in range(2)]
def g1_hreads(st):
    return [f'ds_read_b64_tr_b16 v[{FR+36*st+4*s+2*x}:{FR+36*st+4*s+2*x+1}], v{vH0+s} offset:{1024*x}' for s in range(2) for x in range(2)]
e(f'v_mov_b32 v{vH0}, v{vHb}'); e(f'v_xor_b32 v{vH1}, 32, v{vHb}')
for r in g1_wreads(0, 0): e(r)
e('s_waitcnt vmcnt(10) lgkmcnt(8)')
for r in g1_hreads(0): e(r)
e('s_mov_b32 s8, 0')
e(f's_movk_i32 s9, {6*2048}')
e('s_mov_b32 s10, 0')
lab = e.label('G1'); e(f'{lab}:'); m = e.mark()
for st in range(2):
    b = FR + 36*st
    e('s_add_u32 s4, s12, s8'); e('s_mov_b32 m0, s4')
    e('s_add_u32 s8, s8, 2048'); e(f's_cmp_eq_u32 s8, {RINGW}'); e('s_cselect_b32 s8, 0, s8')
    e(f'v_add_u32 v{vH0}, s8, v{vHb}')
    e('s_waitcnt lgkmcnt(0)')
    e(f'buffer_load_dwordx4 v{vHD}, {srd(sHB)}, s9 offen sc1 lds')
    e(f'buffer_load_dwordx4 v{vHD}, {srd(sHB)}, s9 offen offset:1024 sc1 lds')
    e('s_add_u32 s9, s9, 2048')
    e(f'v_xor_b32 v{vH1}, 32, v{vH0}')
    wr = g1_wreads(1 - st, 7168*(st + 1)); hr = g1_hreads(1 - st)
    mf = []
    for t in range(7):
        for s in range(2):
            ac = ACC1 + 8*t + 4*s
            mf.append(f'v_mfma_f32_16x16x32_bf16 v[{ac}:{ac+3}], v[{b+8+4*t}:{b+8+4*t+3}], v[{b+4*s}:{b+4*s+3}], v[{ac}:{ac+3}]')
    for s in range(2):
        mf.append(f'v_mfma_f32_16x16x32_bf16 v[{S1+4*s}:{S1+4*s+3}], v[{ONES}:{ONES+3}], v[{b+4*s}:{b+4*s+3}], v[{S1+4*s}:{S1+4*s+3}]')
        mf.append(f'v_mfma_f32_16x16x32_bf16 v[{S2+4*s}:{S2+4*s+3}], v[{b+4*s}:{b+4*s+3}], v[{b+4*s}:{b+4*s+3}], v[{S2+4*s}:{S2+4*s+3}]')
    for i, x in enumerate(mf):
        e(x)
        if i < 7: e(wr.pop(0)); e(wr.pop(0))
        if i == 7: e('s_waitcnt vmcnt(10)'); e(hr.pop(0)); e(hr.pop(0))
        if i == 8: e(hr.pop(0)); e(hr.pop(0))
e(f'v_add_u32 v{vW}, {2*7168}, v{vW}')
e('s_add_u32 s10, s10, 1'); e('s_cmp_lt_u32 s10, 8')
e.close_loop(m)
e(f's_cbranch_scc1 {lab}')
e('s_waitcnt lgkmcnt(0)')
stamp()
e('v_and_b32 v13, 3, v1')
e('v_cmp_eq_u32 s[4:5], 1, v13'); e('v_cmp_eq_u32 s[8:9], 2, v13'); e('v_cmp_eq_u32 s[10:11], 3, v13')
e('v_and_b32 v13, 15, v1'); e('v_bfe_u32 v14, v1, 2, 2'); e('v_lshl_add_u32 v13, v14, 4, v13'); e('v_lshlrev_b32 v13, 2, v13')
for s in range(2):
    e(f'v_cndmask_b32 v{24+s}, v{S2+4*s}, v{S2+4*s+1}, s[4:5]')
for s in range(2):
    e(f'v_cndmask_b32 v{24+s}, v{24+s}, v{S2+4*s+2}, s[8:9]')
for s in range(2):
    e(f'v_cndmask_b32 v{24+s}, v{24+s}, v{S2+4*s+3}, s[10:11]')
for s in range(2): e(f'ds_bpermute_b32 v{26+s}, v13, v{24+s}')
for s in range(2): e(f'v_mul_f32 v{24+s}, 0x3b000000, v{S1+4*s}')
e('s_waitcnt lgkmcnt(0)')
for s in range(2): e(f'v_mul_f32 v{26+s}, 0x3b000000, v{26+s}')
for s in range(2): e(f'v_fma_f32 v{26+s}, -v{24+s}, v{24+s}, v{26+s}')
for s in range(2): e(f'v_max_f32 v{26+s}, 0, v{26+s}')
ln_finish(24, 26, 2)
e(f's_lshl_b32 s4, s{RB}, 2'); e(f's_add_u32 s4, s4, s{WV}'); e('s_mul_i32 s4, s4, 112'); e(f's_mul_i32 s5, s{CS}, 7'); e('s_add_u32 s4, s4, s5')
e('s_lshl_b32 s4, s4, 10'); e(f's_add_u32 s4, s4, {L.H1F}'); e('s_add_u32 s5, s4, 4096')
for t in range(7):
    o = FR + 4*t
    for s in range(2):
        ac = ACC1 + 8*t + 4*s
        sel = f'op_sel:[0,{s},0] op_sel_hi:[1,{s},1] neg_lo:[0,1,0] neg_hi:[0,1,0]'
        for hh in range(2): e(f'v_pk_fma_f32 {p2(ac+2*hh)}, {p2(C1+4*t+2*hh)}, v[24:25], {p2(ac+2*hh)} {sel}')
    for s in range(2):
        ac = ACC1 + 8*t + 4*s
        for hh in range(2): e(f'v_pk_mul_f32 {p2(ac+2*hh)}, {p2(ac+2*hh)}, v[26:27] op_sel:[0,{s}] op_sel_hi:[1,{s}]')
    for s in range(2):
        ac = ACC1 + 8*t + 4*s
        for hh in range(2): e(f'v_cvt_pk_bf16_f32 v{o+2*s+hh}, v{ac+2*hh}, v{ac+2*hh+1}')
    for r in range(4): e(f'v_pk_max_i16 v{o+r}, v{o+r}, 0')
    e(f'v_permlane16_swap_b32 v{o}, v{o+2}'); e(f'v_permlane16_swap_b32 v{o+1}, v{o+3}')
    e(f'buffer_store_dwordx4 v[{o}:{o+3}], v5, {srd(sWS)}, s{4 + t//4} offen offset:{1024*(t%4)} sc1')
e(f's_lshl_b32 s4, s{RB}, 4'); e(f's_add_u32 s4, s4, s{CS}'); e('s_lshl_b32 s4, s4, 2'); e(f's_add_u32 s4, s4, s{WV}'); e('s_lshl_b32 s4, s4, 7'); e(f's_add_u32 s4, s4, {L.F3}')
e('s_waitcnt vmcnt(0)')
flag_store(4)
stamp()
e(f's_lshl_b32 s4, s{RT}, 1'); e(f's_lshr_b32 s5, s{WV}, 1'); e('s_add_u32 s4, s4, s5'); e('s_lshl_b32 s4, s4, 15')
e(f's_lshl_b32 s5, s{CT}, 12'); e('s_add_u32 s4, s4, s5'); e(f's_and_b32 s5, s{WV}, 1'); e('s_lshl_b32 s5, s5, 11'); e('s_add_u32 s4, s4, s5'); e(f's_add_u32 s4, s4, {L.HB}')
e('s_mov_b32 m0, s12')
e(f'buffer_load_dwordx4 v5, {srd(sWS)}, s4 offen sc1 lds')
e(f'buffer_load_dwordx4 v5, {srd(sWS)}, s4 offen offset:1024 sc1 lds')
e('s_barrier')
e(f's_lshr_b32 s4, s{RT}, 1'); e('s_lshl_b32 s4, s4, 6'); e(f's_lshl_b32 s5, s{WV}, 4'); e('s_add_u32 s4, s4, s5')
e(f's_and_b32 s5, s{RT}, 1'); e('s_lshl_b32 s5, s5, 1'); e('s_add_u32 s4, s4, s5'); e('s_lshl_b32 s4, s4, 7'); e(f's_add_u32 s4, s4, {L.F3}')
e('v_and_b32 v24, 3, v1'); e('v_lshlrev_b32 v24, 9, v24'); e('v_bfe_u32 v25, v1, 2, 1'); e('v_lshl_add_u32 v24, v25, 7, v24'); e('v_add_u32 v24, s4, v24')
e(f's_mul_i32 s8, s{RT}, {2*112*1024}'); e(f's_mul_i32 s9, s{WV}, {28*1024}'); e('s_add_u32 s8, s8, s9'); e(f's_add_u32 s8, s8, {L.H1F}')
poll([(24, 0)], 25)
stamp()
NB = 48; BF = 32
def g2_load(i):
    st, ks = divmod(i, 28)
    r = BF + 4*(i % NB)
    if ks % 4 == 0: e(f's_add_u32 s9, s8, {st*112*1024 + ks*1024}')
    e(f'buffer_load_dwordx4 v[{r}:{r+3}], v5, {srd(sWS)}, s9 offen offset:{1024*(ks%4)} sc1')
for i in range(NB): g2_load(i)
e(f's_lshl_b32 s4, s{WV}, 14'); e('v_add_u32 v8, s4, v5')
issued = NB
wr = []
for i in range(56):
    st, ks = divmod(i, 28)
    r = BF + 4*(i % NB)
    e(f's_waitcnt vmcnt({issued - i - 1})')
    for dt in range(2):
        acc = f'a[{224+16*dt}:{239+16*dt}]' if st == 0 else f'v[{224+16*dt}:{239+16*dt}]'
        a = 8*ks + 4*dt
        e(f'v_mfma_f32_32x32x16_bf16 {acc}, a[{a}:{a+3}], v[{r}:{r+3}], {"0" if ks == 0 else acc}')
    if i >= 1 and issued < 56:
        g2_load(issued); issued += 1
    if i == 29:
        wr = [f'ds_write_b128 v8, a[{224+4*q}:{227+4*q}] offset:{1024*q}' for q in range(8)]
    if wr: e(wr.pop(0))
for q in range(8): e(f'ds_write_b128 v8, v[{224+4*q}:{227+4*q}] offset:{8192 + 1024*q}')
e('v_lshrrev_b32 v9, 5, v1'); e('v_lshlrev_b32 v9, 2, v9'); e('v_bfe_u32 v10, v1, 2, 2'); e('v_add_u32 v9, v9, v10'); e('v_lshlrev_b32 v9, 6, v9')
e('v_bfe_u32 v10, v1, 4, 1'); e('v_lshl_add_u32 v9, v10, 5, v9'); e('v_and_b32 v10, 3, v1'); e('v_lshl_add_u32 v9, v10, 3, v9'); e('v_add_u32 v9, s12, v9')
for q in range(4): e(f'ds_read_b64_tr_b16 v[{16+2*q}:{17+2*q}], v9 offset:{512*q}')
e(f's_lshl_b32 s4, s{WV}, 12'); e('v_add_u32 v8, s4, v5')
e('v_and_b32 v10, 31, v1'); e('v_lshlrev_b32 v10, 10, v10'); e('v_lshrrev_b32 v11, 5, v1'); e('v_lshl_add_u32 v10, v11, 4, v10')
e(f's_lshl_b32 s4, s{RT}, 16'); e(f's_lshr_b32 s5, s{WV}, 1'); e('s_lshl_b32 s5, s5, 15'); e('s_add_u32 s4, s4, s5')
e(f's_lshl_b32 s5, s{CT}, 7'); e('s_add_u32 s4, s4, s5'); e(f's_and_b32 s5, s{WV}, 1'); e('s_lshl_b32 s5, s5, 6'); e('s_add_u32 s4, s4, s5')
e('s_waitcnt lgkmcnt(0)')
e('s_barrier')
for q in range(4):
    for w in range(4):
        e(f'ds_read_b128 v[{32+16*q+4*w}:{35+16*q+4*w}], v8 offset:{16384*w + 1024*q}')
    if q == 2: e('s_waitcnt lgkmcnt(8)')
for q in range(4):
    unpack(96+4*q, 97+4*q, 16+2*q); unpack(98+4*q, 99+4*q, 17+2*q)
for q in range(4):
    e(f's_waitcnt lgkmcnt({4*(3-q)})')
    b = 32 + 16*q
    for hh in range(2):
        e(f'v_pk_add_f32 {p2(b+2*hh)}, {p2(b+2*hh)}, {p2(b+4+2*hh)}'); e(f'v_pk_add_f32 {p2(b+8+2*hh)}, {p2(b+8+2*hh)}, {p2(b+12+2*hh)}')
    for hh in range(2): e(f'v_pk_add_f32 {p2(b+2*hh)}, {p2(b+2*hh)}, {p2(b+8+2*hh)}')
    for hh in range(2): e(f'v_pk_add_f32 {p2(b+2*hh)}, {p2(b+2*hh)}, {p2(96+4*q+2*hh)}')
    for hh in range(2): e(f'v_cvt_pk_bf16_f32 v{112+2*q+hh}, v{b+2*hh}, v{b+2*hh+1}')
    if q & 1:
        o = 112 + 2*(q-1)
        e(f'v_permlane32_swap_b32 v{o}, v{o+2}'); e(f'v_permlane32_swap_b32 v{o+1}, v{o+3}')
        e(f'buffer_store_dwordx4 v[{o}:{o+3}], v10, {srd(sOUT)}, s4 offen offset:{32*(q//2)}')
if STAMPS:
    e('s_waitcnt vmcnt(0)')
    e('s_memrealtime s[72:73]')
    e(f's_cmp_lg_u32 s{WV}, 0'); e('s_cbranch_scc1 L_END')
    e('s_waitcnt lgkmcnt(0)')
    e('s_lshl_b32 s4, s2, 7'); e(f's_add_u32 s4, s4, {L.STAMP}')
    e('v_mov_b32 v2, 0')
    e('s_mov_b64 exec, 1')
    for i in range(16):
        e(f'v_mov_b32 v4, s{70+2*i}'); e(f'v_mov_b32 v5, s{71+2*i}')
        e(f'buffer_store_dwordx2 v[4:5], v2, {srd(sWS)}, s4 offen offset:{8*i}')
        e('s_nop 1')
e('L_END:')
e('s_endpgm')

hdr = f'''; generated by gen.py (hand-written generator)
; @launch grid=(256,1,1) block=(256,1,1) lds=163840
.amdgcn_target "amdgcn-amd-amdhsa--gfx950"
.text
.globl {NAME}_kernel
.p2align 8
.type {NAME}_kernel,@function
'''
ftr = f'''.fill 8192, 4, 0xBF800000
.section .rodata,"a"
.p2align 6
.amdhsa_kernel {NAME}_kernel
  .amdhsa_next_free_vgpr 512
  .amdhsa_next_free_sgpr 102
  .amdhsa_accum_offset 256
  .amdhsa_group_segment_fixed_size 0
  .amdhsa_kernarg_size 96
  .amdhsa_user_sgpr_count 2
  .amdhsa_user_sgpr_kernarg_segment_ptr 1
  .amdhsa_system_sgpr_workgroup_id_x 1
  .amdhsa_float_denorm_mode_32 3
.end_amdhsa_kernel
'''
open(OUT, 'w').write(hdr + A.text() + ftr)
print('stamps used', stamp_i[0], 'instructions', sum(1 for i in A.ins if i.states))
```

```python
EPOCH = 0
F1 = 0x10000; F1B = 0x18000; F2 = 0x20000; F3 = 0x28000
STATS = 0x50000
PVAR = 0x54000
STAMP = 0x68000
KVR = 0x100000; XT = 0x300000; HB = 0x500000; H1F = 0x700000
WS_USED = H1F + 64*112*1024
import os
STAMP_NAMES = open(os.path.join(os.path.dirname(os.path.abspath(__file__)), 'stamps.txt')).read().split() if os.path.exists(os.path.join(os.path.dirname(os.path.abspath(__file__)), 'stamps.txt')) else []
```

```python
import sys
from asmlib import Asm, vr, ar, sr
import layout as L
NAME = 'sequential_preLN__ssm_conv_h3__dense_activation_relu__prompt'
args = sys.argv[1:]
OUT = [a for a in args if not a.startswith('--')][0]
opt = {}
for a in args:
    if a.startswith('--'):
        k, _, v = a[2:].partition('='); opt[k] = v
STAMPS = 'stamps' in opt
DEF_ST = 'karg kv_arrived kv_stored flag1 flag1b go1 u_landed conv_done flag2 go2 g1_done flag3 go3'
ST_SEL = (opt.get('stamps') or DEF_ST).replace(',', ' ').split()
TOUCH = int(opt.get('touch', 1)); TLBW = int(opt.get('tlb', 1))

A = Asm()
e = A

WV = 3
sK, sV, sSH, sQ, sSK, sWS, sW1, sW2, sOUT, sHB = 28, 32, 36, 40, 44, 48, 52, 56, 60, 64
G, J = 68, 69
EPO, DPAIR, TAG, SPIN = 16, 17, 18, 19
RB, CS, RT, CT = 22, 23, 24, 25
OK = 20
W2D, W2S, W2B, W2E = 28, 29, 30, 31
def srd(r): return f's[{r}:{r+3}]'
st_used = []
def stamp(name):
    if STAMPS and name in ST_SEL:
        r = 76 + 2*len(st_used)
        assert r + 1 <= 101
        e(f's_memtime s[{r}:{r+1}]')
        st_used.append(name)

RING = 114688; RINGW = 12288; NSLOT = 5
KPITCH = 4384; KCH = 8*KPITCH
KC0 = 84992; U0 = 155136; UPITCH = 4352
TB1 = U0; TB2 = 0
STG = 20480
STG3 = 65536
RES0 = 131072
PVS = 139264
C1S = RING + NSLOT*2048
SPINMAX = 1 << 16

def mk_srd(r, lo, nrec):
    e(f's_mov_b32 s{r}, s{lo}'); e(f's_mov_b32 s{r+1}, s{lo+1}')
    e(f's_mov_b32 s{r+2}, {nrec}'); e(f's_mov_b32 s{r+3}, 0x20000')

def poll_issue(voffs, tmp):
    if voffs[0][1] == 'x4':
        e(f'buffer_load_dwordx4 v[{tmp}:{tmp+3}], v{voffs[0][0]}, {srd(sWS)}, 0 offen sc1'); return
    for i, (vo, so) in enumerate(voffs):
        e(f'buffer_load_dword v{tmp+i}, v{vo}, {srd(sWS)}, {so} offen sc1')
def poll_test(n, tmp):
    for i in range(n): e(f'v_xor_b32 v{tmp+i}, s{TAG}, v{tmp+i}')
    if n == 4:
        e(f'v_or3_b32 v{tmp}, v{tmp}, v{tmp+1}, v{tmp+2}'); e(f'v_or_b32 v{tmp}, v{tmp}, v{tmp+3}')
    e(f'v_cmp_ne_u32 vcc, 0, v{tmp}')
def poll(voffs, tmp, first_issued=False):
    lab = e.label('POLL'); done = e.label('PDONE'); chk = e.label('PCHK')
    e(f's_mov_b32 s{SPIN}, 0')
    if first_issued: e(f's_branch {chk}')
    e(f'{lab}:')
    poll_issue(voffs, tmp)
    e(f'{chk}:')
    e(f's_add_u32 s{SPIN}, s{SPIN}, 1')
    e('s_waitcnt vmcnt(0)')
    poll_test(len(voffs), tmp)
    e(f's_cbranch_vccz {done}')
    e(f's_cmp_lt_u32 s{SPIN}, {SPINMAX}')
    e(f's_cbranch_scc1 {lab}')
    e(f'{done}:')

def flag_store(soff):
    e('s_mov_b64 exec, 1')
    e(f'buffer_store_dword v250, v251, {srd(sWS)}, s{soff} offen sc1')
    e('s_mov_b64 exec, -1')
def wg_flag(base, packed=False):
    e(f's_cmp_lg_u32 s{WV}, 0')
    lab = e.label('NF'); e(f's_cbranch_scc1 {lab}')
    if packed:
        e('s_and_b32 s4, s2, 63'); e('s_lshl_b32 s4, s4, 7'); e('s_lshr_b32 s5, s2, 6'); e('s_lshl_b32 s5, s5, 2'); e('s_add_u32 s4, s4, s5')
    else:
        e('s_lshl_b32 s4, s2, 7')
    e(f's_add_u32 s4, s4, {base}')
    flag_store(4)
    e(f'{lab}:')

def bf16r(dst, src):
    e(f'v_cvt_pk_bf16_f32 v{dst}, v{src}, v{src}')
    e(f'v_and_b32 v{dst}, 0xffff0000, v{dst}')
def unpack(dlo, dhi, src):
    e(f'v_lshlrev_b32 v{dlo}, 16, v{src}')
    e(f'v_and_b32 v{dhi}, 0xffff0000, v{src}')
def p2(b): return f'v[{b}:{b+1}]'
def rstd_from_var(var):
    bf16r(var, var); e(f'v_add_f32 v{var}, 0x3727c5ac, v{var}'); bf16r(var, var)
    e(f'v_sqrt_f32 v{var}, v{var}'); bf16r(var, var); e(f'v_rcp_f32 v{var}, v{var}')

e(f'{NAME}_kernel:')
e('s_cmp_ge_u32 s2, 256')
e('s_cbranch_scc1 L_END')
e('s_load_dwordx16 s[4:19], s[0:1], 0')
e('s_load_dwordx8 s[20:27], s[0:1], 64')
e('s_getpc_b64 s[30:31]')
e('v_lshlrev_b32 v240, 7, v0')
e('global_load_dword v241, v240, s[30:31]')
if STAMPS:
    e('s_memrealtime s[70:71]'); e('s_memtime s[74:75]')
e('v_and_b32 v1, 63, v0')
e('v_lshrrev_b32 v2, 6, v0')
e(f's_and_b32 s{G}, s2, 7')
e(f'v_readfirstlane_b32 s{WV}, v2')
e(f's_lshr_b32 s{J}, s2, 3')
e('v_and_b32 v4, 15, v0')
e('v_lshrrev_b32 v2, 4, v0')
e('v_lshlrev_b32 v2, 12, v2')
e('v_lshl_add_u32 v2, v4, 3, v2')
e(f's_lshl_b32 vcc_lo, s{J}, 16')
e(f's_lshl_b32 vcc_hi, s{G}, 7')
e('s_add_u32 vcc_lo, vcc_lo, vcc_hi')
e('v_add_u32 v2, vcc_lo, v2')
e('v_add_u32 v3, 0xfffff400, v2')
e(f's_lshl_b32 vcc_lo, s{G}, 9')
e('v_lshlrev_b32 v4, 5, v4')
e('v_add_u32 v4, vcc_lo, v4')
e('v_lshlrev_b32 v5, 4, v1')
e(f's_and_b32 vcc_lo, s{WV}, 1')
e('s_lshl_b32 vcc_lo, vcc_lo, 11')
e('v_add_u32 v7, vcc_lo, v5')
e('v_add_u32 v6, -16, v7')
for r in (sSH, sK, sV, sQ):
    e(f's_mov_b32 s{r+2}, {4096 if r == sSH else 2097152}'); e(f's_mov_b32 s{r+3}, 0x20000')
e('s_waitcnt lgkmcnt(0)')
stamp('karg')
SH, K, V, X, XR, SKW = 8, 16, 30, 38, 46, 56
e(f's_mov_b64 s[{sK}:{sK+1}], s[6:7]')
for i in range(4): e(f'buffer_load_dwordx2 v[{K+6+2*i}:{K+7+2*i}], v2, {srd(sK)}, 0 offen offset:{1024*i}')
e(f's_mov_b64 s[{sV}:{sV+1}], s[8:9]')
for i in range(4): e(f'buffer_load_dwordx2 v[{V+2*i}:{V+1+2*i}], v2, {srd(sV)}, 0 offen offset:{1024*i}')
for i in range(3): e(f'buffer_load_dwordx2 v[{K+2*i}:{K+1+2*i}], v3, {srd(sK)}, 0 offen offset:{1024*i}')
e(f's_mov_b64 s[{sSH}:{sSH+1}], s[10:11]')
e(f'buffer_load_dwordx4 v[{SH}:{SH+3}], v4, {srd(sSH)}, 0 offen')
e(f'buffer_load_dwordx4 v[{SH+4}:{SH+7}], v4, {srd(sSH)}, 0 offen offset:16')
e(f's_mov_b64 s[{sQ}:{sQ+1}], s[4:5]')
for i in range(4): e(f'buffer_load_dwordx2 v[{X+2*i}:{X+1+2*i}], v2, {srd(sQ)}, 0 offen offset:{1024*i}')
e('v_lshrrev_b32 v242, 5, v1'); e('v_and_b32 v243, 31, v1'); e('v_lshlrev_b32 v242, 10, v242'); e('v_lshl_add_u32 v242, v243, 4, v242')
e('s_lshl_b32 s4, s2, 13'); e(f's_lshl_b32 s5, s{WV}, 11'); e('s_add_u32 s4, s4, s5')
for i in range(2): e(f'buffer_load_dwordx4 v[{XR+4*i}:{XR+3+4*i}], v242, {srd(sQ)}, s4 offen offset:{512*i}')
e(f's_lshl_b32 s4, s{G}, 6'); e(f's_lshl_b32 s5, s{J}, 1'); e('s_add_u32 s4, s4, s5')
e('s_lshl_b32 s6, s4, 1')
e(f's_load_dword s{DPAIR}, s[14:15], s6')
e(f's_load_dword s{EPO}, s[26:27], {L.EPOCH}')
e(f's_lshr_b32 s5, s{WV}, 1'); e('s_add_u32 s7, s4, s5')
e('s_lshl_b32 s5, s7, 12')
e(f's_add_u32 s{sSK}, s12, s5'); e(f's_addc_u32 s{sSK+1}, s13, 0'); e(f's_mov_b32 s{sSK+2}, 4096'); e(f's_mov_b32 s{sSK+3}, 0x20000')
e(f'buffer_load_dwordx4 v[{SKW}:{SKW+3}], v6, {srd(sSK)}, 0 offen')
e(f'buffer_load_dwordx4 v[{SKW+4}:{SKW+7}], v7, {srd(sSK)}, 0 offen')
e(f'buffer_load_dwordx4 v[{SKW+8}:{SKW+11}], v7, {srd(sSK)}, 0 offen offset:1008')
e(f'buffer_load_dwordx4 v[{SKW+12}:{SKW+15}], v7, {srd(sSK)}, 0 offen offset:1024')
mk_srd(sWS, 26, L.WS_USED); mk_srd(sW1, 18, 512*1792*2); mk_srd(sW2, 20, 512*1792*2); mk_srd(sOUT, 22, 2097152)
NX = 0
if TOUCH:
    e(f's_mul_i32 s4, s2, {56*128}'); e(f's_mul_i32 s5, s{WV}, {14*128}'); e('s_add_u32 s4, s4, s5')
    e('v_lshlrev_b32 v243, 7, v1')
    e('s_mov_b64 exec, 0x3fff')
    e(f'buffer_load_dword v244, v243, {srd(sW2)}, s4 offen'); e(f'buffer_load_dword v245, v243, {srd(sW1)}, s4 offen')
    e('s_mov_b64 exec, -1')
    NX += 2
if TLBW:
    e('v_lshlrev_b32 v243, 20, v1'); e('s_lshl_b32 s4, s2, 7')
    e('s_mov_b64 exec, 0x3fff')
    e(f'buffer_load_dword v246, v243, {srd(sWS)}, s4 offen sc1')
    e('s_mov_b64 exec, 3')
    e(f'buffer_load_dword v247, v243, {srd(sOUT)}, s4 offen')
    e('s_mov_b64 exec, -1')
    NX += 2
NA = 4 + 2 + 4 + NX
e(f's_lshl_b32 s{RB}, s{G}, 1'); e(f's_and_b32 s5, s{J}, 1'); e(f's_add_u32 s{RB}, s{RB}, s5'); e(f's_lshr_b32 s{CS}, s2, 4')
e(f's_lshl_b32 s{RT}, s{G}, 2'); e(f's_and_b32 s5, s{J}, 3'); e(f's_add_u32 s{RT}, s{RT}, s5'); e(f's_lshr_b32 s{CT}, s2, 5')
e(f's_lshl_b32 s5, s{RB}, 2'); e(f's_add_u32 s5, s5, s{WV}'); e('s_lshl_b32 s5, s5, 15'); e(f's_add_u32 s5, s5, {L.HB}')
e(f's_add_u32 s{sHB}, s26, s5'); e(f's_addc_u32 s{sHB+1}, s27, 0'); e(f's_mov_b32 s{sHB+2}, 32768'); e(f's_mov_b32 s{sHB+3}, 0x20000')
e('v_and_b32 v232, 15, v0')
e('v_lshrrev_b32 v233, 4, v0')
e('v_and_b32 v234, 7, v0'); e('v_lshlrev_b32 v234, 1, v234')
e('v_xor_b32 v235, v233, v234')
e('v_lshlrev_b32 v236, 9, v232')
e(f'v_lshl_add_u32 v237, v235, 3, v236')
e('v_xor_b32 v235, 15, v235')
e(f'v_lshl_add_u32 v236, v235, 3, v236')
e(f'v_add_u32 v236, {TB1}, v236')
e('v_lshrrev_b32 v233, 5, v0'); e('v_and_b32 v234, 7, v0'); e('v_xor_b32 v233, v233, v234')
e('v_lshrrev_b32 v235, 3, v0')
e('v_lshlrev_b32 v238, 7, v235'); e('v_lshl_add_u32 v238, v233, 4, v238')
e(f'v_add_u32 v252, {TB1}, v238')
e('v_lshlrev_b32 v239, 12, v235'); e('v_lshl_add_u32 v239, v234, 4, v239')
e(f's_lshl_b32 s4, s{G}, 18')
e(f's_lshl_b32 s5, s{J}, 7')
e(f's_add_u32 s10, s4, {L.XT}'); e('s_add_u32 s10, s10, s5'); e('s_add_u32 s11, s10, 131072')
e(f's_add_u32 s8, s4, {L.KVR + 4096 - 128}'); e('s_sub_u32 s8, s8, s5'); e('s_add_u32 s9, s8, 131072')
e('v_mov_b32 v251, 0')
WP, KF, VF, ACC, PK = 72, 88, 116, 132, 148
e(f's_waitcnt vmcnt({NA + 9})')
for i in range(3, 7):
    for cp in range(2): unpack(KF + 4*i + 2*cp, KF + 4*i + 2*cp + 1, K + 2*i + cp)
e(f's_waitcnt vmcnt({NA + 5})')
for o in range(4):
    for cp in range(2): unpack(VF + 4*o + 2*cp, VF + 4*o + 2*cp + 1, V + 2*o + cp)
e(f's_waitcnt vmcnt({NA + 2})')
for i in range(3):
    for cp in range(2): unpack(KF + 4*i + 2*cp, KF + 4*i + 2*cp + 1, K + 2*i + cp)
e(f's_waitcnt vmcnt({NA})')
stamp('kv_arrived')
for cp in range(2):
    for hf in range(2):
        d0 = SH + 4*cp + 2*hf
        unpack(WP + 0 + 2*cp + hf, WP + 4 + 2*cp + hf, d0)
        unpack(WP + 8 + 2*cp + hf, WP + 12 + 2*cp + hf, d0 + 1)
for t in range(4):
    for o in range(4):
        for cp in range(2):
            acc = ACC + 4*o + 2*cp; kf = KF + 4*(o + 3 - t) + 2*cp; w = WP + 4*t + 2*cp
            if t == 0: e(f'v_pk_mul_f32 {p2(acc)}, {p2(kf)}, {p2(w)}')
            else: e(f'v_pk_fma_f32 {p2(acc)}, {p2(kf)}, {p2(w)}, {p2(acc)}')
for o in range(4):
    for cp in range(2): e(f'v_pk_mul_f32 {p2(ACC+4*o+2*cp)}, {p2(ACC+4*o+2*cp)}, {p2(VF+4*o+2*cp)}')
for i in range(4):
    e(f'v_cvt_pk_bf16_f32 v{PK+2*i}, v{ACC+12+i}, v{ACC+8+i}')
    e(f'v_cvt_pk_bf16_f32 v{PK+2*i+1}, v{ACC+4+i}, v{ACC+i}')
    e(f'ds_write_b64 v236, {p2(PK+2*i)} offset:{128*i}')
e('s_waitcnt lgkmcnt(0)')
e('s_barrier')
e(f'ds_read_b128 v[156:159], v252')
e(f'ds_read_b128 v[160:163], v252 offset:4096')
e(f's_mul_i32 s{TAG}, s{EPO}, 1664525'); e(f's_add_u32 s{TAG}, s{TAG}, 1013904223')
e('s_mov_b32 s4, 0x05040100'); e('s_mov_b32 s5, 0x07060302')
e(f'v_mov_b32 v250, s{TAG}')
e('s_waitcnt lgkmcnt(1)')
e(f'buffer_store_dwordx4 v[156:159], v239, {srd(sWS)}, s8 offen sc1')
e('s_waitcnt lgkmcnt(0)')
e(f'buffer_store_dwordx4 v[160:163], v239, {srd(sWS)}, s9 offen sc1')
stamp('kv_stored')
e(f's_waitcnt vmcnt({2 + 4 + NX + 2})')
for cp in range(2):
    for hf in range(2):
        i = 2*cp + hf
        e(f'v_perm_b32 v{PK+2*i}, v{X+2+cp}, v{X+cp}, s{4+hf}')
        e(f'v_perm_b32 v{PK+2*i+1}, v{X+6+cp}, v{X+4+cp}, s{4+hf}')
        e(f'ds_write_b64 v237, {p2(PK+2*i)} offset:{TB2+128*i}')
e('s_waitcnt lgkmcnt(0)')
e('s_barrier')
e(f'ds_read_b128 v[164:167], v238 offset:{TB2}')
e(f'ds_read_b128 v[168:171], v238 offset:{TB2+4096}')
e(f's_waitcnt vmcnt({4 + NX + 2})')
F = 88
for i in range(4): unpack(F + 2*i, F + 2*i + 1, XR + i)
e('s_waitcnt lgkmcnt(1)')
e(f'buffer_store_dwordx4 v[164:167], v239, {srd(sWS)}, s10 offen sc1')
for i in range(4, 8): unpack(F + 2*i, F + 2*i + 1, XR + i)
e('s_waitcnt lgkmcnt(0)')
e(f'buffer_store_dwordx4 v[168:171], v239, {srd(sWS)}, s11 offen sc1')
e(f'v_pk_add_f32 {p2(104)}, {p2(F)}, {p2(F+2)}'); e(f'v_pk_mul_f32 {p2(106)}, {p2(F)}, {p2(F)}')
e(f'v_pk_fma_f32 {p2(106)}, {p2(F+2)}, {p2(F+2)}, {p2(106)}')
for i in range(2, 8):
    e(f'v_pk_add_f32 {p2(104)}, {p2(104)}, {p2(F+2*i)}'); e(f'v_pk_fma_f32 {p2(106)}, {p2(F+2*i)}, {p2(F+2*i)}, {p2(106)}')
e('v_add_f32 v104, v104, v105'); e('v_add_f32 v105, v106, v107')
for mode in ('quad_perm:[1,0,3,2]', 'quad_perm:[2,3,0,1]', 'row_half_mirror', 'row_mirror'):
    for r in (104, 105): e(f'v_add_f32_dpp v{r}, v{r}, v{r} {mode} row_mask:0xf bank_mask:0xf')
e('v_mov_b32 v106, v104'); e('v_mov_b32 v107, v105')
e('v_permlane16_swap_b32 v104, v106'); e('v_permlane16_swap_b32 v105, v107')
e(f'v_pk_add_f32 {p2(104)}, {p2(104)}, {p2(106)}')
e('v_mul_f32 v104, 0x3b000000, v104'); e('v_mul_f32 v105, 0x3b000000, v105')
e('v_fma_f32 v105, -v104, v104, v105'); e('v_max_f32 v105, 0, v105')
bf16r(104, 104)
rstd_from_var(105)
e('v_and_b32 v106, 1, v1'); e('v_cmp_eq_u32 vcc, 1, v106')
e('v_mul_f32 v104, v104, -v105')
e('v_lshlrev_b32 v106, 4, v106'); e('v_lshrrev_b32 v107, 5, v1'); e('v_lshl_add_u32 v106, v107, 2, v106')
e('v_cndmask_b32 v104, v105, v104, vcc')
e('s_lshl_b32 s4, s2, 6'); e(f's_lshr_b32 s5, s{WV}, 1'); e('s_lshl_b32 s5, s5, 5'); e('s_add_u32 s4, s4, s5')
e(f's_and_b32 s5, s{WV}, 1'); e('s_lshl_b32 s5, s5, 3'); e('s_add_u32 s4, s4, s5'); e(f's_add_u32 s4, s4, {L.STATS}')
e('s_mov_b32 exec_lo, 3'); e('s_mov_b32 exec_hi, 3')
e(f'buffer_store_dword v104, v106, {srd(sWS)}, s4 offen sc1')
e('s_mov_b64 exec, -1')
e('s_waitcnt vmcnt(3)')
e('s_barrier')
wg_flag(L.F1)
stamp('flag1')

def w2_setup():
    e('v_lshrrev_b32 v20, 3, v1'); e('v_lshlrev_b32 v20, 10, v20')
    e('v_bfe_u32 v21, v1, 4, 1'); e('v_lshlrev_b32 v21, 2, v21'); e('v_and_b32 v22, 7, v1'); e('v_xor_b32 v21, v21, v22')
    e('v_lshl_add_u32 v20, v21, 4, v20')
    e(f's_mul_i32 s12, s{WV}, {STG}')
    e(f's_mul_i32 s{W2B}, s{WV}, {448*1024}'); e(f's_lshl_b32 s4, s{CT}, 7'); e(f's_add_u32 s{W2B}, s{W2B}, s4')
    e(f's_add_u32 s{W2E}, s{W2B}, {28*16384}')
    e(f's_and_b32 s4, s{CT}, 3'); e(f's_mul_i32 s4, s4, {7*16384}'); e(f's_add_u32 s{W2S}, s{W2B}, s4')
    e(f's_mov_b32 s{W2D}, s12')
def w2_setup_read():
    e('v_lshrrev_b32 v21, 5, v1'); e('v_lshlrev_b32 v21, 3, v21'); e('v_bfe_u32 v22, v1, 2, 2'); e('v_add_u32 v21, v21, v22')
    e('v_lshlrev_b32 v21, 7, v21')
    e('v_bfe_u32 v22, v1, 4, 1'); e('v_lshl_add_u32 v21, v22, 5, v21')
    e('v_and_b32 v22, 3, v1'); e('v_lshl_add_u32 v21, v22, 3, v21')
    e('v_bfe_u32 v22, v1, 3, 1'); e('v_lshl_add_u32 v23, v22, 6, v21')
    e('v_add_u32 v21, s12, v23')
    e('v_xor_b32 v22, 64, v21')
def w2_dma1():
    return [f's_mov_b32 m0, s{W2D}', f's_add_u32 s{W2D}, s{W2D}, 1024',
            f'buffer_load_dwordx4 v20, {srd(sW2)}, s{W2S} offen lds',
            f's_add_u32 s{W2S}, s{W2S}, 8192', f's_cmp_ge_u32 s{W2S}, s{W2E}', f's_cselect_b32 s{W2S}, s{W2B}, s{W2S}']
def w2_dma(n):
    for _ in range(n):
        for x in w2_dma1(): e(x)
def w2_dma_loop(n):
    e(f's_mov_b32 s4, {n}')
    lab = e.label('W2L'); e(f'{lab}:')
    w2_dma(1)
    e('s_sub_u32 s4, s4, 1'); e('s_cmp_lg_u32 s4, 0'); e(f's_cbranch_scc1 {lab}')
def w2_read(ks0, n):
    for k in range(n):
        for dt in range(2):
            for x in range(2):
                a = 8*(ks0+k) + 4*dt + 2*x
                e(f'ds_read_b64_tr_b16 a[{a}:{a+1}], v{21+dt} offset:{2048*k + 512*x}')
        if k % 3 == 2 and k != n - 1: e('s_waitcnt lgkmcnt(4)')
    e('s_waitcnt lgkmcnt(0)')
w2_setup()
w2_dma_loop(8)
e(f's_lshr_b32 s4, s{WV}, 1'); e(f's_mul_i32 s5, s4, {KCH}'); e(f's_add_u32 s5, s5, {KC0}')
e(f'v_add_u32 v8, s5, v7')
for i in range(2):
    W = SKW + 8*i; O = 88 + 24*i; O2 = 96 + 24*i; M = 104 + 24*i
    for sh in (4, 8):
        e(f'ds_write_b128 v8, v[{W+sh//2}:{W+sh//2+3}] offset:{(sh-1)*KPITCH + 256 + 1024*i}')
    for n in range(6): e(f'v_alignbit_b32 v{O+n}, v{W+n+1}, v{W+n}, 16')
    for n in range(6): e(f'v_alignbit_b32 v{O2+n}, v{W+n+2}, v{W+n+1}, 16')
    for n in range(6): e(f'v_mov_b32 v{M+n}, v{W+n+1}')
    src = {1: O, 2: M, 3: O2, 5: O+2, 6: M+2, 7: O2+2}
    for sh in (1, 5, 3, 7, 2, 6):
        e(f'ds_write_b128 v8, v[{src[sh]}:{src[sh]+3}] offset:{(sh-1)*KPITCH + 256 + 1024*i}')
for n in range(4): e(f'v_mov_b32 v{12+n}, 0')
e('v_lshrrev_b32 v9, 4, v0'); e(f's_movk_i32 s4, {KPITCH}'); e('v_and_b32 v10, 15, v0'); e('v_lshlrev_b32 v10, 4, v10')
e('v_mad_u32_u24 v9, v9, s4, v10')
e(f'v_add_u32 v9, {KC0}, v9')
e('s_waitcnt lgkmcnt(8)')
e('ds_write_b128 v9, v[12:15]')
e(f'v_add_u32 v9, {U0 + 4096}, v10')
e('s_mov_b64 exec, 0xffff')
e('ds_write_b128 v9, v[12:15]'); e(f'ds_write_b128 v9, v[12:15] offset:{UPITCH}')
e('s_mov_b64 exec, -1')
w2_setup_read()
e('s_waitcnt vmcnt(8)')
e('s_barrier')
wg_flag(L.F1B, True)
stamp('flag1b')
w2_dma_loop(12)
e(f's_lshr_b32 s6, s{WV}, 1'); e(f's_mul_i32 s6, s6, {UPITCH}'); e(f's_add_u32 s6, s6, {U0}')
e('v_and_b32 v8, 15, v1'); e('v_lshrrev_b32 v9, 4, v1')
e('v_and_b32 v10, 7, v1'); e(f's_movk_i32 s4, {KPITCH}'); e('v_mul_u32_u24 v10, s4, v10')
e('v_bfe_u32 v11, v1, 3, 1'); e('v_lshl_add_u32 v10, v11, 8, v10')
e('v_lshlrev_b32 v11, 4, v9'); e('v_sub_u32 v10, v10, v11')
e(f's_lshr_b32 s4, s{WV}, 1'); e(f's_mul_i32 s5, s4, {KCH}'); e(f's_add_u32 s5, s5, {KC0 + 48}')
e('v_add_u32 v10, s5, v10')
e('v_add_u32 v11, v8, v9'); e('v_lshlrev_b32 v11, 4, v11'); e('s_add_u32 s5, s6, 288'); e('v_sub_u32 v11, s5, v11')
e('v_lshrrev_b32 v12, 5, v1'); e('v_lshlrev_b32 v12, 7, v12'); e('v_lshl_add_u32 v12, v8, 3, v12')
e('v_bfe_u32 v13, v1, 4, 1'); e('v_lshl_add_u32 v12, v13, 2, v12')
e('v_lshlrev_b32 v13, 1, v12')
e('v_lshlrev_b32 v14, 3, v12')
e('v_lshlrev_b32 v16, 7, v1'); e(f'v_add_u32 v16, {L.F1B}, v16')
e(f's_and_b32 s4, s{WV}, 1'); e('s_lshl_b32 s8, s4, 1'); e('s_sub_u32 s9, 6, s8')
e('s_add_u32 s5, s6, 4088 - 512'); e('v_sub_u32 v15, s5, v13')
e('s_lshl_b32 s4, s8, 9'); e('v_subrev_u32 v18, s4, v15'); e('s_lshl_b32 s4, s9, 9'); e('v_subrev_u32 v19, s4, v15')
e('s_lshl_b32 s10, s7, 12'); e(f's_add_u32 s10, s10, {L.XT}')
e('s_lshl_b32 s11, s7, 6'); e(f's_add_u32 s11, s11, {L.HB}')
for pi in range(2):
    e(f's_lshl_b32 s4, s{8+pi}, 9'); e(f's_add_u32 s{32+pi}, s4, s10')
    e(f's_lshl_b32 s4, s{8+pi}, 11'); e(f's_add_u32 s{34+pi}, s4, {L.STATS}')
    e(f's_lshl_b32 s4, s{8+pi}, 18'); e(f's_add_u32 s{36+pi}, s4, s11')
PX4 = [(16, 'x4')]*4
e('v_bfe_u32 v17, v1, 4, 1'); e('v_lshlrev_b32 v17, 3, v17'); e('v_lshrrev_b32 v24, 5, v1'); e('v_lshl_add_u32 v17, v24, 2, v17')
e('v_bfe_u32 v24, v1, 2, 2'); e('v_add_u32 v17, v17, v24'); e('v_lshlrev_b32 v17, 15, v17')
e('v_and_b32 v24, 3, v1'); e('v_lshl_add_u32 v17, v24, 4, v17')
e('s_lshl_b32 s4, s7, 12'); e(f's_and_b32 s5, s{WV}, 1'); e('s_lshl_b32 s5, s5, 11'); e('s_add_u32 s4, s4, s5'); e(f's_add_u32 s41, s4, {L.KVR}')
e('s_add_u32 s42, s5, s6')
e('v_and_b32 v24, 31, v1'); e('v_lshlrev_b32 v24, 10, v24')
e(f's_lshl_b32 s4, s{G}, 7'); e(f's_add_u32 s4, s4, {L.F1}'); e('v_add_u32 v24, s4, v24')
poll_issue([(24, 0)], 25)
e('s_waitcnt vmcnt(1)')
w2_read(0, 10)
e(f's_mov_b32 s{W2D}, s12')
poll([(24, 0)], 25, first_issued=True)
stamp('go1')
e('s_mov_b32 m0, s42')
e(f'buffer_load_dwordx4 v5, {srd(sWS)}, s41 offen sc1 lds')
e(f'buffer_load_dwordx4 v5, {srd(sWS)}, s41 offen offset:1024 sc1 lds')
poll_issue(PX4, 26)
CACC, EX, EKV, FB, EST = 32, 48, 56, 64, 192
for r in range(16): e(f'v_mov_b32 v{CACC+r}, 0')
def epi_loads():
    for ti in range(4):
        pi, tt = divmod(ti, 2)
        e(f'buffer_load_dwordx2 v[{EX+2*ti}:{EX+2*ti+1}], v13, {srd(sWS)}, s{32+pi} offen offset:{512*tt} sc1')
        e(f'buffer_load_dwordx4 v[{EST+8*ti}:{EST+8*ti+3}], v14, {srd(sWS)}, s{34+pi} offen offset:{2048*tt} sc1')
        e(f'buffer_load_dwordx4 v[{EST+8*ti+4}:{EST+8*ti+7}], v14, {srd(sWS)}, s{34+pi} offen offset:{2048*tt+16} sc1')
e('s_waitcnt vmcnt(0) lgkmcnt(0)')
e('s_barrier')
stamp('u_landed')
poll_test(4, 26)
e(f's_mov_b32 s{OK}, 0')
e('s_cbranch_vccnz L_NOX')
epi_loads()
e(f's_mov_b32 s{OK}, 1')
e('L_NOX:')
def conv_role(tiles, nf):
    pairs = [(a, b - a, ti) for ti, b in enumerate(tiles) for a in range(b + 1)]
    pairs.sort(key=lambda p: (max(p[0], p[1]), p[0]))
    def reads(st, off):
        r = []
        for i in range(nf):
            r.append(f'ds_read_b128 v[{FB+64*st+4*i}:{FB+64*st+4*i+3}], v10 offset:{512*i + off}')
            r.append(f'ds_read_b128 v[{FB+64*st+32+4*i}:{FB+64*st+32+4*i+3}], v11 offset:{512*(7-i) + off}')
        return r
    rd = reads(0, 0)
    for i, r in enumerate(rd):
        e(r)
        if i == 11: e('s_waitcnt lgkmcnt(4)')
    e('s_mov_b32 s4, 0')
    lab = e.label('CONV'); e(f'{lab}:'); m = e.mark()
    for st in range(2):
        e('s_waitcnt lgkmcnt(0)')
        rd = reads(1 - st, 64*(st + 1))
        dm = {0: [3, 9, 15], 1: [5, 12]}[st]
        for i, (a, c, ti) in enumerate(pairs):
            ka = FB + 64*st + 4*a; uc = FB + 64*st + 32 + 4*c; ac = CACC + 4*ti
            e(f'v_mfma_f32_16x16x32_bf16 v[{ac}:{ac+3}], v[{ka}:{ka+3}], v[{uc}:{uc+3}], v[{ac}:{ac+3}]')
            for _ in range(2 if i < 3 else 1):
                if rd: e(rd.pop(0))
            if i in dm: w2_dma(1)
        assert not rd
    e('v_add_u32 v10, 128, v10'); e('v_add_u32 v11, 128, v11')
    e('s_add_u32 s4, s4, 1'); e('s_cmp_lt_u32 s4, 4')
    e.close_loop(m)
    e(f's_cbranch_scc1 {lab}')
e(f's_bitcmp1_b32 s{WV}, 0'); e('s_cbranch_scc1 L_ROLEB')
conv_role([0, 1, 6, 7], 8)
e('s_branch L_CONVDONE')
e('L_ROLEB:')
conv_role([2, 3, 4, 5], 6)
e('L_CONVDONE:')
for ti in range(4):
    e(f'ds_read_b64 v[{EKV+2*ti}:{EKV+2*ti+1}], v{18+ti//2} offset:{512*(1-ti%2)}')
e('s_waitcnt lgkmcnt(4)')
stamp('conv_done')
e(f's_cmp_eq_u32 s{OK}, 1'); e('s_cbranch_scc1 L_HAVEX')
poll(PX4, 26)
epi_loads()
e('s_waitcnt vmcnt(0)')
e('L_HAVEX:')
e(f's_lshr_b32 s4, s{WV}, 1'); e('s_lshl_b32 s4, s4, 4'); e(f's_lshr_b32 s4, s{DPAIR}, s4'); e('s_lshl_b32 s4, s4, 16'); e('s_mov_b32 s5, s4')
T0 = 64; HP = 128
for ti in range(4):
    t = T0 + 16*ti
    e(f's_waitcnt vmcnt({20 + 3*(3-ti)})')
    unpack(t, t+1, EX+2*ti); unpack(t+2, t+3, EX+2*ti+1)
    for hh in range(2):
        e(f'v_pk_fma_f32 {p2(t+4+2*hh)}, {p2(t+2*hh)}, {p2(EST+8*ti+2*hh)}, {p2(EST+8*ti+4+2*hh)}')
e('s_waitcnt lgkmcnt(0)')
for ti in range(4):
    ac = CACC + 4*ti; t = T0 + 16*ti
    unpack(t+9, t+8, EKV+2*ti+1); unpack(t+11, t+10, EKV+2*ti)
    for hh in range(2): e(f'v_pk_fma_f32 {p2(ac+2*hh)}, {p2(t+8+2*hh)}, s[4:5], {p2(ac+2*hh)}')
    for hh in range(2): e(f'v_pk_fma_f32 {p2(t+4+2*hh)}, {p2(t+4+2*hh)}, {p2(ac+2*hh)}, {p2(t+2*hh)}')
    for hh in range(2): e(f'v_cvt_pk_bf16_f32 v{HP+2*ti+hh}, v{t+4+2*hh}, v{t+5+2*hh}')
    if ti & 1:
        b = HP + 2*(ti - 1)
        e(f'v_permlane16_swap_b32 v{b}, v{b+2}'); e(f'v_permlane16_swap_b32 v{b+1}, v{b+3}')
        e(f'buffer_store_dwordx4 v[{b}:{b+3}], v17, {srd(sWS)}, s{36+ti//2} offen sc1')
stamp('h_stored')
e('s_movk_i32 s4, 4682'); e('s_movk_i32 s5, 3360')
for i in range(7):
    e(f'v_add_u32 v{24+i}, {64*i}, v1')
    e(f'v_mul_u32_u24 v31, s4, v{24+i}'); e('v_lshrrev_b32 v31, 16, v31')
    e(f'v_lshlrev_b32 v{24+i}, 4, v{24+i}'); e(f'v_mad_u32_u24 v{24+i}, v31, s5, v{24+i}')
e(f's_mul_i32 s8, s{WV}, {128*3584}'); e(f's_mul_i32 s9, s{CS}, 224'); e('s_add_u32 s8, s8, s9')
e(f's_mul_i32 s9, s{WV}, {128*224}')
e('s_waitcnt vmcnt(2)')
w2_read(10, 10)
e('s_waitcnt vmcnt(0)')
e('s_barrier')
wg_flag(L.F2)
stamp('flag2')

e('s_mov_b32 s10, 0')
lab = e.label('W1L'); e(f'{lab}:')
for i in range(7):
    e(f's_add_u32 s4, s9, {1024*i}'); e('s_mov_b32 m0, s4')
    e(f'buffer_load_dwordx4 v{24+i}, {srd(sW1)}, s8 offen lds')
e(f's_add_u32 s8, s8, {32*3584}'); e('s_add_u32 s9, s9, 7168'); e('s_add_u32 s10, s10, 1'); e('s_cmp_lt_u32 s10, 4')
e(f's_cbranch_scc1 {lab}')
e('v_lshlrev_b32 v16, 7, v0'); e(f'v_add_u32 v16, {L.F2}, v16')
poll_issue([(16, 0)], 25)
ACC1, S1, S2, ONES, FR, C1 = 64, 120, 128, 136, 140, 212
vWa, vH0, vH1, vHD, vHb, vWn, vWb = 8, 9, 10, 11, 12, 13, 14
e('v_lshrrev_b32 v13, 2, v1'); e('s_movk_i32 s4, 224'); e(f'v_mul_u32_u24 v{vWb}, s4, v13'); e('v_and_b32 v15, 3, v1'); e(f'v_lshl_add_u32 v{vWb}, v15, 3, v{vWb}')
e('v_lshlrev_b32 v12, 6, v13'); e('v_lshl_add_u32 v12, v15, 3, v12'); e('v_bfe_u32 v15, v1, 4, 1'); e('v_lshlrev_b32 v15, 5, v15'); e('v_xor_b32 v12, v12, v15')
e(f's_mul_i32 s12, s{WV}, {RINGW}'); e(f's_add_u32 s12, s12, {RING}')
e('v_add_u32 v12, s12, v12')
e(f'v_xor_b32 v11, v5, v15')
for r in range(4): e(f'v_mov_b32 v{ONES+r}, 0x3f803f80')
e(f's_mul_i32 s4, s{WV}, {4*7168}'); e(f'v_add_u32 v13, s4, v{vWb}')
e(f's_and_b32 s13, s{CS}, 14')
e('s_lshl_b32 s9, s13, 11')
e('s_mul_i32 s13, s13, 7168')
for r in range(ACC1, S2 + 4): e(f'v_mov_b32 v{r}, 0')
e('s_waitcnt vmcnt(1)')
stamp('w1_landed')
for ks in range(4):
    b = FR + 36*(ks & 1)
    for t in range(7):
        for x in range(2):
            e(f'ds_read_b64_tr_b16 v[{b+4*t+2*x}:{b+4*t+2*x+1}], v13 offset:{7168*ks + 3584*x + 32*t}')
    if ks:
        pb = FR + 36*((ks-1) & 1)
        e('s_waitcnt lgkmcnt(14)')
        for t in range(7):
            c = '0' if ks == 1 else f'v[{C1+4*t}:{C1+4*t+3}]'
            e(f'v_mfma_f32_16x16x32_bf16 v[{C1+4*t}:{C1+4*t+3}], v[{pb+4*t}:{pb+4*t+3}], v[{ONES}:{ONES+3}], {c}')
e('s_waitcnt lgkmcnt(0)')
for t in range(7):
    e(f'v_mfma_f32_16x16x32_bf16 v[{C1+4*t}:{C1+4*t+3}], v[{FR+36+4*t}:{FR+36+4*t+3}], v[{ONES}:{ONES+3}], v[{C1+4*t}:{C1+4*t+3}]')
e('v_lshrrev_b32 v13, 4, v1'); e('v_lshlrev_b32 v13, 4, v13'); e(f'v_add_u32 v13, {C1S}, v13')
e(f's_mul_i32 s4, s{WV}, 448'); e('v_add_u32 v15, s4, v13')
e('s_mov_b32 exec_lo, 0x00010001'); e('s_mov_b32 exec_hi, 0x00010001')
for t in range(7): e(f'ds_write_b128 v15, v[{C1+4*t}:{C1+4*t+3}] offset:{64*t}')
e('s_mov_b64 exec, -1')
poll([(16, 0)], 25, first_issued=True)
e('s_waitcnt lgkmcnt(0)')
e('s_barrier')
stamp('go2')
def h_dma(slot_s):
    return [f'buffer_load_dwordx4 v{vHD}, {srd(sHB)}, s9 offen sc1 lds',
            f'buffer_load_dwordx4 v{vHD}, {srd(sHB)}, s9 offen offset:1024 sc1 lds']
for i in range(4):
    e(f's_add_u32 s4, s12, {2048*i}'); e('s_mov_b32 m0, s4')
    for x in h_dma(4): e(x)
    e('s_add_u32 s9, s9, 2048'); e('s_and_b32 s9, s9, 0x7fff')
for w in range(4):
    dst = C1 if w == 0 else FR + 28*((w-1) % 2)
    for t in range(7): e(f'ds_read_b128 v[{dst+4*t}:{dst+4*t+3}], v13 offset:{448*w + 64*t}')
    if w >= 1:
        e(f's_waitcnt lgkmcnt(7)')
        if w >= 2:
            src = FR + 28*((w-2) % 2)
            for r in range(0, 28, 2): e(f'v_pk_add_f32 {p2(C1+r)}, {p2(C1+r)}, {p2(src+r)}')
e('s_waitcnt lgkmcnt(0)')
for r in range(0, 28, 2): e(f'v_pk_add_f32 {p2(C1+r)}, {p2(C1+r)}, {p2(FR+r)}')
def g1_wreads(st, reg, off):
    return [f'ds_read_b64_tr_b16 v[{FR+36*st+8+4*t+2*x}:{FR+36*st+8+4*t+2*x+1}], v{reg} offset:{off + 3584*x + 32*t}' for t in range(7) for x in range(2)]
def g1_hreads(st):
    return [f'ds_read_b64_tr_b16 v[{FR+36*st+4*s+2*x}:{FR+36*st+4*s+2*x+1}], v{vH0+s} offset:{1024*x}' for s in range(2) for x in range(2)]
e(f'v_add_u32 v{vWn}, s13, v{vWb}')
e(f'v_mov_b32 v{vH0}, v{vHb}'); e(f'v_xor_b32 v{vH1}, 32, v{vHb}')
for r in g1_wreads(0, vWn, 0): e(r)
e('s_waitcnt vmcnt(6) lgkmcnt(8)')
for r in g1_hreads(0): e(r)
e('s_mov_b32 s8, 0')
e(f's_movk_i32 s11, {4*2048}')
e('s_mov_b32 s10, 0')
lab = e.label('G1'); e(f'{lab}:'); m = e.mark()
e(f'v_mov_b32 v{vWa}, v{vWn}')
e(f's_add_u32 s13, s13, {2*7168}'); e(f's_cmp_eq_u32 s13, {16*7168}'); e('s_cselect_b32 s13, 0, s13')
e(f'v_add_u32 v{vWn}, s13, v{vWb}')
for st in range(2):
    b = FR + 36*st
    e('s_add_u32 s8, s8, 2048'); e(f's_cmp_eq_u32 s8, {NSLOT*2048}'); e('s_cselect_b32 s8, 0, s8')
    e('s_add_u32 s4, s12, s11'); e('s_mov_b32 m0, s4')
    e('s_add_u32 s11, s11, 2048'); e(f's_cmp_eq_u32 s11, {NSLOT*2048}'); e('s_cselect_b32 s11, 0, s11')
    e(f'v_add_u32 v{vH0}, s8, v{vHb}')
    e('s_waitcnt lgkmcnt(0)')
    wr = g1_wreads(1 - st, vWa if st == 0 else vWn, 7168 if st == 0 else 0); hr = g1_hreads(1 - st)
    dm = h_dma(0)
    mf = []
    for t in range(7):
        for s in range(2):
            ac = ACC1 + 8*t + 4*s
            mf.append(f'v_mfma_f32_16x16x32_bf16 v[{ac}:{ac+3}], v[{b+8+4*t}:{b+8+4*t+3}], v[{b+4*s}:{b+4*s+3}], v[{ac}:{ac+3}]')
    for s in range(2):
        mf.append(f'v_mfma_f32_16x16x32_bf16 v[{S1+4*s}:{S1+4*s+3}], v[{ONES}:{ONES+3}], v[{b+4*s}:{b+4*s+3}], v[{S1+4*s}:{S1+4*s+3}]')
    for i, x in enumerate(mf):
        e(x)
        if i == 0: e(f'v_xor_b32 v{vH1}, 32, v{vH0}')
        if i in (1, 4):
            x_ = dm.pop(0)
            if 'g1nodma' not in opt: e(x_)
        if i < 8 and i not in (1, 4): e(wr.pop(0)); e(wr.pop(0))
        if i == 8: e(wr.pop(0)); e(wr.pop(0)); e('s_add_u32 s9, s9, 2048'); e('s_and_b32 s9, s9, 0x7fff')
        if i == 9:
            if 'g1nowait' not in opt: e('s_waitcnt vmcnt(6)')
            e(hr.pop(0)); e(hr.pop(0))
        if i == 10: e(hr.pop(0)); e(hr.pop(0))
    assert not wr and not hr and not dm
    sk = e.label('S2K'); s1 = e.label('S2B')
    e('s_cmp_lg_u32 s10, 0'); e(f's_cbranch_scc1 {sk}')
    e(f's_bitcmp1_b32 s{CS}, 0'); e(f's_cbranch_scc1 {s1}')
    e(f'v_mfma_f32_16x16x32_bf16 v[{S2}:{S2+3}], v[{b}:{b+3}], v[{b}:{b+3}], v[{S2}:{S2+3}]')
    e(f's_branch {sk}')
    e(f'{s1}:')
    e(f'v_mfma_f32_16x16x32_bf16 v[{S2}:{S2+3}], v[{b+4}:{b+7}], v[{b+4}:{b+7}], v[{S2}:{S2+3}]')
    e(f'{sk}:')
e('s_add_u32 s10, s10, 1'); e('s_cmp_lt_u32 s10, 8')
e.close_loop(m)
e(f's_cbranch_scc1 {lab}')
stamp('g1_done')
e(f's_lshl_b32 s8, s{RB}, 2'); e(f's_add_u32 s8, s8, s{WV}'); e('s_mul_i32 s4, s8, 112'); e(f's_mul_i32 s5, s{CS}, 7'); e('s_add_u32 s4, s4, s5')
e('s_lshl_b32 s4, s4, 10'); e(f's_add_u32 s4, s4, {L.H1F}'); e('s_add_u32 s5, s4, 4096')
for s in range(2): e(f'v_mul_f32 v{26+s}, 0x3b000000, v{S1+4*s}')
for s in range(2): bf16r(24 + s, 26 + s)
e('s_waitcnt lgkmcnt(0)')
for t in range(7):
    o = FR + 4*t
    for s in range(2):
        ac = ACC1 + 8*t + 4*s
        sel = f'op_sel:[0,{s},0] op_sel_hi:[1,{s},1] neg_lo:[0,1,0] neg_hi:[0,1,0]'
        for hh in range(2): e(f'v_pk_fma_f32 {p2(ac+2*hh)}, {p2(C1+4*t+2*hh)}, v[24:25], {p2(ac+2*hh)} {sel}')
    for s in range(2):
        ac = ACC1 + 8*t + 4*s
        for hh in range(2): e(f'v_cvt_pk_bf16_f32 v{o+2*s+hh}, v{ac+2*hh}, v{ac+2*hh+1}')
    for r in range(4): e(f'v_pk_max_i16 v{o+r}, v{o+r}, 0')
    e(f'v_permlane16_swap_b32 v{o}, v{o+2}'); e(f'v_permlane16_swap_b32 v{o+1}, v{o+3}')
    e(f'buffer_store_dwordx4 v[{o}:{o+3}], v5, {srd(sWS)}, s{4 + t//4} offen offset:{1024*(t%4)} sc1')
e('v_and_b32 v13, 3, v1')
e('v_cmp_eq_u32 s[10:11], 1, v13'); e('v_cmp_eq_u32 s[32:33], 2, v13'); e('v_cmp_eq_u32 s[34:35], 3, v13')
e(f's_bitcmp1_b32 s{CS}, 0'); e('s_cselect_b64 vcc, -1, 0')
e(f'v_cndmask_b32 v28, v{S1}, v{S1+4}, vcc'); e('v_cndmask_b32 v29, v26, v27, vcc')
e(f'v_cndmask_b32 v30, v{S2}, v{S2+1}, s[10:11]'); e('v_mul_f32 v28, 0xbe000000, v28')
e(f'v_cndmask_b32 v30, v30, v{S2+2}, s[32:33]'); e('v_and_b32 v13, 15, v1')
e(f'v_cndmask_b32 v30, v30, v{S2+3}, s[34:35]'); e('v_lshlrev_b32 v13, 2, v13')
e('v_fmac_f32 v30, v28, v29')
e('s_lshl_b32 s9, s8, 10'); e(f's_lshl_b32 s5, s{CS}, 6'); e('s_add_u32 s9, s9, s5'); e(f's_add_u32 s9, s9, {L.PVAR}')
e('s_mov_b32 exec_lo, 0x00F0000F'); e('s_mov_b32 exec_hi, 0xF0000F00')
e(f'buffer_store_dword v30, v13, {srd(sWS)}, s9 offen sc1')
e('s_mov_b64 exec, -1')
e(f's_lshl_b32 s4, s{RB}, 4'); e(f's_add_u32 s4, s4, s{CS}'); e('s_lshl_b32 s4, s4, 2'); e(f's_add_u32 s4, s4, s{WV}'); e('s_lshl_b32 s4, s4, 7'); e(f's_add_u32 s4, s4, {L.F3}')
e(f's_lshl_b32 s{W2D}, s{WV}, 14'); e(f's_add_u32 s{W2D}, s{W2D}, {STG3}')
e(f'v_add_u32 v21, s{W2D}, v23'); e('v_xor_b32 v22, 64, v21')
e(f's_lshl_b32 s8, s{RT}, 1'); e(f's_lshr_b32 s5, s{WV}, 1'); e(f's_lshr_b32 s9, s{CT}, 2'); e('s_xor_b32 s5, s5, s9'); e('s_add_u32 s8, s8, s5')
e('s_lshl_b32 s10, s8, 15')
e(f's_lshl_b32 s5, s{CT}, 12'); e('s_add_u32 s10, s10, s5'); e(f's_and_b32 s5, s{WV}, 1'); e('s_lshl_b32 s5, s5, 11'); e('s_add_u32 s10, s10, s5'); e(f's_add_u32 s10, s10, {L.HB}')
e(f's_lshl_b32 s12, s{WV}, 11'); e(f's_add_u32 s12, s12, {RES0}')
e(f's_lshr_b32 s11, s{RT}, 1'); e('s_lshl_b32 s11, s11, 6'); e(f's_lshl_b32 s5, s{WV}, 4'); e('s_add_u32 s11, s11, s5')
e(f's_and_b32 s5, s{RT}, 1'); e('s_lshl_b32 s5, s5, 1'); e('s_add_u32 s11, s11, s5'); e('s_lshl_b32 s11, s11, 7'); e(f's_add_u32 s11, s11, {L.F3}')
e('v_and_b32 v24, 3, v1'); e('v_lshlrev_b32 v24, 9, v24'); e('v_bfe_u32 v25, v1, 2, 1'); e('v_lshl_add_u32 v24, v25, 7, v24'); e('v_add_u32 v24, s11, v24')
e('s_waitcnt vmcnt(0)')
flag_store(4)
stamp('flag3')
e(f's_or_b32 s4, s2, s{WV}'); e('s_cmp_lg_u32 s4, 0')
lab = e.label('NE'); e(f's_cbranch_scc1 {lab}')
e(f's_mov_b32 s4, {L.EPOCH}')
flag_store(4)
e(f'{lab}:')
e('s_barrier')
w2_dma_loop(16)
e('s_mov_b32 m0, s12')
e(f'buffer_load_dwordx4 v5, {srd(sWS)}, s10 offen sc1 lds')
e(f'buffer_load_dwordx4 v5, {srd(sWS)}, s10 offen offset:1024 sc1 lds')
poll_issue([(24, 0)], 25)
e(f's_lshl_b32 s4, s{RT}, 1'); e('s_add_u32 s4, s4, s9'); e(f's_mul_i32 s4, s4, {112*1024}')
e(f's_mul_i32 s5, s{WV}, {28*1024}'); e(f's_add_u32 s5, s5, {L.H1F}'); e('s_add_u32 s32, s4, s5')
e(f's_lshl_b32 s4, s{RT}, 1'); e('s_xor_b32 s33, s9, 1'); e('s_add_u32 s4, s4, s33'); e(f's_mul_i32 s4, s4, {112*1024}'); e('s_add_u32 s33, s4, s5')
e(f's_and_b32 s34, s{CT}, 3'); e(f's_mul_i32 s34, s34, {7*1024}')
e('v_lshrrev_b32 v26, 5, v1'); e('v_xor_b32 v26, s9, v26'); e('v_lshlrev_b32 v26, 10, v26'); e('v_and_b32 v27, 31, v1'); e('v_lshl_add_u32 v26, v27, 2, v26')
e(f's_lshl_b32 s35, s{RT}, 11'); e(f's_lshl_b32 s5, s{WV}, 8'); e('s_add_u32 s35, s35, s5'); e(f's_add_u32 s35, s35, {L.PVAR}')
e('s_waitcnt vmcnt(3)')
w2_read(20, 8)
poll([(24, 0)], 25, first_issued=True)
stamp('go3')
LA = int(opt.get('la', 8)); NB = LA + 2; BF = 32
e(f'buffer_load_dword v28, v26, {srd(sWS)}, s35 offen sc1'); e(f'buffer_load_dword v29, v26, {srd(sWS)}, s35 offen offset:128 sc1')
def g2_load(i):
    p, ks = divmod(i, 28)
    r = BF + 4*(i % NB)
    if ks % 7 == 0:
        if ks == 0: e('s_mov_b32 s36, s34')
        else:
            e(f's_add_u32 s36, s36, {7*1024}'); e(f's_cmp_eq_u32 s36, {28*1024}'); e('s_cselect_b32 s36, 0, s36')
        e(f's_add_u32 s37, s36, s{32+p}'); e('s_add_u32 s38, s37, 4096')
    k = ks % 7
    e(f'buffer_load_dwordx4 v[{r}:{r+3}], v5, {srd(sWS)}, s{37 + k//4} offen offset:{1024*(k%4)} sc1')
for i in range(LA): g2_load(i)
e(f's_lshl_b32 s4, s{WV}, 14'); e('v_add_u32 v8, s4, v5')
e(f's_lshl_b32 s4, s{WV}, 8'); e(f's_add_u32 s4, s4, {PVS}'); e('v_lshl_add_u32 v9, v1, 2, s4')
issued = LA
wr = []
for i in range(56):
    p, ks = divmod(i, 28)
    r = BF + 4*(i % NB)
    e(f's_waitcnt vmcnt({issued - i - 1})')
    for dt in range(2):
        acc = f'a[{224+16*dt}:{239+16*dt}]' if p == 0 else f'v[{224+16*dt}:{239+16*dt}]'
        a = 8*ks + 4*dt
        e(f'v_mfma_f32_32x32x16_bf16 {acc}, a[{a}:{a+3}], v[{r}:{r+3}], {"0" if ks == 0 else acc}')
        if dt == 0 and issued < 56:
            g2_load(issued); issued += 1
    if i == 0:
        e('v_add_f32 v28, v28, v29'); e('ds_write_b32 v9, v28')
    if i == 29:
        wr = [f'ds_write_b128 v8, a[{224+4*q}:{227+4*q}] offset:{1024*q}' for q in range(8)]
    if wr: e(wr.pop(0))
    if i == 40:
        e('v_lshrrev_b32 v9, 5, v1'); e('v_lshlrev_b32 v9, 2, v9'); e('v_bfe_u32 v10, v1, 2, 2'); e('v_add_u32 v9, v9, v10'); e('v_lshlrev_b32 v9, 6, v9')
    if i == 41:
        e('v_bfe_u32 v10, v1, 4, 1'); e('v_lshl_add_u32 v9, v10, 5, v9'); e('v_and_b32 v10, 3, v1'); e('v_lshl_add_u32 v9, v10, 3, v9'); e('v_add_u32 v9, s12, v9')
    if i == 42:
        for q in range(4): e(f'ds_read_b64_tr_b16 v[{16+2*q}:{17+2*q}], v9 offset:{512*q}')
    if i == 43:
        e('v_and_b32 v11, 31, v1'); e('v_lshlrev_b32 v10, 10, v11'); e('v_lshrrev_b32 v12, 5, v1'); e('v_lshl_add_u32 v10, v12, 4, v10')
        e('s_lshl_b32 s4, s8, 15'); e(f's_lshl_b32 s5, s{CT}, 7'); e('s_add_u32 s4, s4, s5'); e(f's_and_b32 s5, s{WV}, 1'); e('s_lshl_b32 s5, s5, 6'); e('s_add_u32 s39, s4, s5')
    if i == 44:
        e(f's_lshr_b32 s4, s{WV}, 1'); e('s_lshl_b32 s4, s4, 7'); e(f's_add_u32 s4, s4, {PVS}'); e('v_lshl_add_u32 v11, v11, 2, s4')
        e(f's_lshl_b32 s4, s{WV}, 12'); e('v_add_u32 v12, s4, v5')
    if i == 46:
        e('s_waitcnt lgkmcnt(0)')
    if 46 <= i < 50:
        q = i - 46
        unpack(96+4*q, 97+4*q, 16+2*q); unpack(98+4*q, 99+4*q, 17+2*q)
stamp('g2_done')
for q in range(8): e(f'ds_write_b128 v8, v[{224+4*q}:{227+4*q}] offset:{8192 + 1024*q}')
e('s_waitcnt lgkmcnt(0)')
e('s_barrier')
e('ds_read2st64_b32 v[14:15], v11 offset0:0 offset1:1'); e('ds_read2st64_b32 v[16:17], v11 offset0:2 offset1:3')
for q in range(4):
    for w in range(4):
        e(f'ds_read_b128 v[{32+16*q+4*w}:{35+16*q+4*w}], v12 offset:{16384*w + 1024*q}')
    if q == 1:
        e('s_waitcnt lgkmcnt(8)')
        e('v_add_f32 v14, v14, v15'); e('v_add_f32 v16, v16, v17'); e('v_add_f32 v14, v14, v16')
        e('v_mul_f32 v14, 0x3b000000, v14'); e('v_max_f32 v14, 0, v14')
rstd_from_var(14)
for q in range(4):
    e(f's_waitcnt lgkmcnt({4*(3-q)})')
    b = 32 + 16*q
    for hh in range(2):
        e(f'v_pk_add_f32 {p2(b+2*hh)}, {p2(b+2*hh)}, {p2(b+4+2*hh)}'); e(f'v_pk_add_f32 {p2(b+8+2*hh)}, {p2(b+8+2*hh)}, {p2(b+12+2*hh)}')
    for hh in range(2): e(f'v_pk_add_f32 {p2(b+2*hh)}, {p2(b+2*hh)}, {p2(b+8+2*hh)}')
    for hh in range(2): e(f'v_pk_fma_f32 {p2(b+2*hh)}, {p2(b+2*hh)}, v[14:15], {p2(96+4*q+2*hh)} op_sel_hi:[1,0,1]')
    for hh in range(2): e(f'v_cvt_pk_bf16_f32 v{112+2*q+hh}, v{b+2*hh}, v{b+2*hh+1}')
    if q & 1:
        o = 112 + 2*(q-1)
        e(f'v_permlane32_swap_b32 v{o}, v{o+2}'); e(f'v_permlane32_swap_b32 v{o+1}, v{o+3}')
        e(f'buffer_store_dwordx4 v[{o}:{o+3}], v10, {srd(sOUT)}, s39 offen offset:{32*(q//2)}')
if STAMPS:
    stamp('end')
    e('s_waitcnt vmcnt(0)')
    e('s_memrealtime s[72:73]')
    e(f's_cmp_lg_u32 s{WV}, 0'); e('s_cbranch_scc1 L_END')
    e('s_waitcnt lgkmcnt(0)')
    e('s_lshl_b32 s4, s2, 7'); e(f's_add_u32 s4, s4, {L.STAMP}')
    e('v_mov_b32 v2, 0')
    e('s_mov_b64 exec, 1')
    for i in range(16):
        e(f'v_mov_b32 v4, s{70+2*i}'); e(f'v_mov_b32 v5, s{71+2*i}')
        e(f'buffer_store_dwordx2 v[4:5], v2, {srd(sWS)}, s4 offen offset:{8*i}')
        e('s_nop 1')
e('L_END:')
e('s_endpgm')

hdr = f'''; generated by gen2.py (own generator script)
; @launch grid=(256,1,1) block=(256,1,1) lds=163840
.amdgcn_target "amdgcn-amd-amdhsa--gfx950"
.text
.globl {NAME}_kernel
.p2align 8
.type {NAME}_kernel,@function
'''
ftr = f'''.fill 8192, 4, 0xBF800000
.section .rodata,"a"
.p2align 6
.amdhsa_kernel {NAME}_kernel
  .amdhsa_next_free_vgpr 512
  .amdhsa_next_free_sgpr 102
  .amdhsa_accum_offset 256
  .amdhsa_group_segment_fixed_size 0
  .amdhsa_kernarg_size 96
  .amdhsa_user_sgpr_count 2
  .amdhsa_user_sgpr_kernarg_segment_ptr 1
  .amdhsa_system_sgpr_workgroup_id_x 1
  .amdhsa_float_denorm_mode_32 3
.end_amdhsa_kernel
'''
open(OUT, 'w').write(hdr + A.text() + ftr)
if STAMPS: open('stamps.txt', 'w').write(' '.join(st_used))
print('stamps', st_used, 'instructions', sum(1 for i in A.ins if i.states))
```

```python
EPOCH = 0
F1 = 0x10000; F1B = 0x18000; F1C = 0x08000; F2 = 0x20000; F3 = 0x28000
STATS = 0x50000
PVAR = 0x54000
STAMP = 0x68000
C1P = 0x70000
KVR = 0x100000; XT = 0x300000; HB = 0x500000; H1F = 0x700000
W1F = 0xE00000; W2F = 0x1000000
WS_USED = W2F + 512*1792*2
import os
_p = os.path.join(os.path.dirname(os.path.abspath(__file__)), 'stamps.txt')
STAMP_NAMES = open(_p).read().split() if os.path.exists(_p) else []
```

```python
import sys
from asmlib import Asm, vr, ar, sr
import layout as L
NAME = 'sequential_preLN__ssm_conv_h3__dense_activation_relu__prompt'
args = sys.argv[1:]
OUT = [a for a in args if not a.startswith('--')][0]
opt = {}
for a in args:
    if a.startswith('--'):
        k, _, v = a[2:].partition('='); opt[k] = v
STAMPS = 'stamps' in opt
DEF_ST = 'karg kv_arrived kv_stored flag1 flag1b go1 u_landed conv_done flag2 go2 g1_done flag3 go3'
ST_SEL = (opt.get('stamps') or DEF_ST).replace(',', ' ').split()
NT = ' nt' if int(opt.get('nt', 1)) else ''

A = Asm()
e = A

WV = 3
sK, sV, sSH, sQ, sSK, sWS, sW1, sW2, sOUT, sHB = 28, 32, 36, 40, 44, 48, 52, 56, 60, 64
G, J = 68, 69
EPO, DPAIR, TAG, SPIN = 16, 17, 18, 19
RB, CS, RT, CT = 22, 23, 24, 25
OK = 20

def srd(r): return f's[{r}:{r+3}]'
st_used = []
def stamp(name):
    if STAMPS and name in ST_SEL:
        r = 76 + 2*len(st_used)
        assert r + 1 <= 101
        e(f's_memtime s[{r}:{r+1}]')
        st_used.append(name)

RING = 114688; RINGW = 12288; NSLOT = 5
KPITCH = 4384; KCH = 8*KPITCH
KC0 = 84992; U0 = 155136; UPITCH = 4352
TB1 = U0; TB2 = 0
C1S = 8192
CVB = 16384
RES0 = 131072
PVS = 139264
SPINMAX = 1 << 16

def mk_srd(r, lo, nrec):
    e(f's_mov_b32 s{r}, s{lo}'); e(f's_mov_b32 s{r+1}, s{lo+1}')
    e(f's_mov_b32 s{r+2}, {nrec}'); e(f's_mov_b32 s{r+3}, 0x20000')

def poll_issue(voffs, tmp):
    if voffs[0][1] == 'x4':
        e(f'buffer_load_dwordx4 v[{tmp}:{tmp+3}], v{voffs[0][0]}, {srd(sWS)}, 0 offen sc1'); return
    if voffs[0][1] == 'x2':
        e(f'buffer_load_dwordx2 v[{tmp}:{tmp+1}], v{voffs[0][0]}, {srd(sWS)}, 0 offen sc1'); return
    for i, (vo, so) in enumerate(voffs):
        e(f'buffer_load_dword v{tmp+i}, v{vo}, {srd(sWS)}, {so} offen sc1')
def poll_test(n, tmp):
    for i in range(n): e(f'v_xor_b32 v{tmp+i}, s{TAG}, v{tmp+i}')
    if n == 4:
        e(f'v_or3_b32 v{tmp}, v{tmp}, v{tmp+1}, v{tmp+2}'); e(f'v_or_b32 v{tmp}, v{tmp}, v{tmp+3}')
    if n == 2: e(f'v_or_b32 v{tmp}, v{tmp}, v{tmp+1}')
    e(f'v_cmp_ne_u32 vcc, 0, v{tmp}')
def poll(voffs, tmp, first_issued=False, wait=0):
    lab = e.label('POLL'); done = e.label('PDONE'); chk = e.label('PCHK')
    e(f's_mov_b32 s{SPIN}, 0')
    if first_issued:
        e(f's_waitcnt vmcnt({wait})')
        e(f's_branch {chk}')
    e(f'{lab}:')
    e('s_mov_b64 exec, vcc')
    poll_issue(voffs, tmp)
    e(f's_add_u32 s{SPIN}, s{SPIN}, 1')
    e('s_waitcnt vmcnt(0)')
    e(f'{chk}:')
    poll_test(len(voffs), tmp)
    e(f's_cbranch_vccz {done}')
    e(f's_cmp_lt_u32 s{SPIN}, {SPINMAX}')
    e(f's_cbranch_scc1 {lab}')
    e(f'{done}:')
    e('s_mov_b64 exec, -1')

def flag_store(soff):
    e('s_mov_b64 exec, 1')
    e(f'buffer_store_dword v250, v251, {srd(sWS)}, s{soff} offen sc1')
    e('s_mov_b64 exec, -1')
def wg_flag(base, packed=False):
    e(f's_cmp_lg_u32 s{WV}, 0')
    lab = e.label('NF'); e(f's_cbranch_scc1 {lab}')
    if packed:
        e('s_and_b32 s4, s2, 63'); e('s_lshl_b32 s4, s4, 7'); e('s_lshr_b32 s5, s2, 6'); e('s_lshl_b32 s5, s5, 2'); e('s_add_u32 s4, s4, s5')
    else:
        e('s_lshl_b32 s4, s2, 7')
    e(f's_add_u32 s4, s4, {base}')
    flag_store(4)
    e(f'{lab}:')

def bf16r(dst, src):
    e(f'v_cvt_pk_bf16_f32 v{dst}, v{src}, v{src}')
    e(f'v_and_b32 v{dst}, 0xffff0000, v{dst}')
def unpack(dlo, dhi, src):
    e(f'v_lshlrev_b32 v{dlo}, 16, v{src}')
    e(f'v_and_b32 v{dhi}, 0xffff0000, v{src}')
def p2(b): return f'v[{b}:{b+1}]'
def rstd_from_var(var):
    bf16r(var, var); e(f'v_add_f32 v{var}, 0x3727c5ac, v{var}'); bf16r(var, var)
    e(f'v_sqrt_f32 v{var}, v{var}'); bf16r(var, var); e(f'v_rcp_f32 v{var}, v{var}')

NTX = ' nt' if int(opt.get('ntx', 1)) else ''
NTT = ''
NTW = ''
def gtouch():
    e(f's_cmp_lt_u32 s{WV}, 2'); e('s_cbranch_scc1 L_NOGT')
    e(f's_mul_i32 s4, s2, {56*128}'); e(f's_and_b32 s5, s{WV}, 1'); e(f's_mul_i32 s5, s5, {28*128}'); e('s_add_u32 s4, s4, s5')
    e('v_lshlrev_b32 v243, 7, v1')
    e('s_mov_b64 exec, 0xfffffff')
    e(f'buffer_load_dword v253, v243, {srd(sW1)}, s4 offen'); e(f'buffer_load_dword v254, v243, {srd(sW2)}, s4 offen')
    e('s_mov_b64 exec, -1')
    e('L_NOGT:')
def wait_role(n01, n23):
    a = e.label('WR'); b = e.label('WR')
    e(f's_cmp_lt_u32 s{WV}, 2'); e(f's_cbranch_scc1 {a}')
    e(f's_waitcnt vmcnt({n23})'); e(f's_branch {b}')
    e(f'{a}:'); e(f's_waitcnt vmcnt({n01})'); e(f'{b}:')
def touch(k):
    if k == 0: return ['s_mov_b32 exec_hi, 0xffffff', f'buffer_load_dword v247, v21, {srd(sW1)}, s30 offen{NTT}', 's_mov_b32 exec_hi, -1']
    if k == 1: return [f'buffer_load_dword v248, v22, {srd(sW2)}, s31 offen{NTT}', 's_add_u32 s31, s31, 8192']
    return ['s_mov_b32 exec_hi, 0xffff', f'buffer_load_dword v255, v22, {srd(sW2)}, s31 offen{NTT}', 's_mov_b32 exec_hi, -1']
TPOS = [int(x) for x in opt.get('tpos', '1,4,6').split(',')]
def weave(mf, fill):
    for i, x in enumerate(mf):
        e(x)
        for y in fill.get(i, []): e(y)
def spread(n, items, start=0, per=2, fill=None):
    fill = fill if fill is not None else {}
    i = start
    for it in items:
        while len(fill.setdefault(i, [])) >= per: i += 1
        assert i < n, (i, n)
        fill[i].append(it)
    return fill
e(f'{NAME}_kernel:')
e('s_cmp_ge_u32 s2, 256')
e('s_cbranch_scc1 L_END')
e('s_load_dwordx16 s[4:19], s[0:1], 0')
e('s_load_dwordx8 s[20:27], s[0:1], 64')
e('s_getpc_b64 s[30:31]')
e('v_lshlrev_b32 v240, 7, v0')
e('global_load_dword v241, v240, s[30:31]')
if STAMPS:
    e('s_memrealtime s[70:71]'); e('s_memtime s[74:75]')
e('v_and_b32 v1, 63, v0')
e('v_lshrrev_b32 v2, 6, v0')
e(f's_and_b32 s{G}, s2, 7')
e(f'v_readfirstlane_b32 s{WV}, v2')
e(f's_lshr_b32 s{J}, s2, 3')
e('v_and_b32 v4, 15, v0')
e('v_lshrrev_b32 v2, 4, v0')
e('v_lshlrev_b32 v2, 12, v2')
e('v_lshl_add_u32 v2, v4, 3, v2')
e(f's_lshl_b32 vcc_lo, s{J}, 16')
e(f's_lshl_b32 vcc_hi, s{G}, 7')
e('s_add_u32 vcc_lo, vcc_lo, vcc_hi')
e('v_add_u32 v2, vcc_lo, v2')
e('v_add_u32 v3, 0xfffff400, v2')
e(f's_lshl_b32 vcc_lo, s{G}, 9')
e('v_lshlrev_b32 v4, 5, v4')
e('v_add_u32 v4, vcc_lo, v4')
e('v_lshlrev_b32 v5, 4, v1')
for r in (sSH, sK, sV, sQ):
    e(f's_mov_b32 s{r+2}, {4096 if r == sSH else 2097152}'); e(f's_mov_b32 s{r+3}, 0x20000')
e('v_lshrrev_b32 v242, 5, v1'); e('v_and_b32 v243, 31, v1'); e('v_lshlrev_b32 v242, 10, v242'); e('v_lshl_add_u32 v242, v243, 4, v242')
e('s_waitcnt lgkmcnt(0)')
stamp('karg')
SH, K, V, X, XR, SKW = 8, 16, 30, 38, 46, 56
e(f's_mov_b64 s[{sK}:{sK+1}], s[6:7]')
for i in range(4): e(f'buffer_load_dwordx2 v[{K+6+2*i}:{K+7+2*i}], v2, {srd(sK)}, 0 offen offset:{1024*i}{NT}')
e(f's_mov_b64 s[{sSH}:{sSH+1}], s[10:11]')
e(f'buffer_load_dwordx4 v[{SH}:{SH+3}], v4, {srd(sSH)}, 0 offen')
e(f'buffer_load_dwordx4 v[{SH+4}:{SH+7}], v4, {srd(sSH)}, 0 offen offset:16')
e(f's_mov_b64 s[{sV}:{sV+1}], s[8:9]')
for i in range(4): e(f'buffer_load_dwordx2 v[{V+2*i}:{V+1+2*i}], v2, {srd(sV)}, 0 offen offset:{1024*i}{NT}')
for i in range(3): e(f'buffer_load_dwordx2 v[{K+2*i}:{K+1+2*i}], v3, {srd(sK)}, 0 offen offset:{1024*i}{NT}')
e(f's_mov_b64 s[{sQ}:{sQ+1}], s[4:5]')
for i in range(4): e(f'buffer_load_dwordx2 v[{X+2*i}:{X+1+2*i}], v2, {srd(sQ)}, 0 offen offset:{1024*i}{NTX}')
e('s_lshl_b32 s4, s2, 13'); e(f's_lshl_b32 s5, s{WV}, 11'); e('s_add_u32 s4, s4, s5')
for i in range(2): e(f'buffer_load_dwordx4 v[{XR+4*i}:{XR+3+4*i}], v242, {srd(sQ)}, s4 offen offset:{512*i}{NTX}')
NA = 6
e(f's_lshl_b32 s4, s{G}, 6'); e(f's_lshl_b32 s5, s{J}, 1'); e('s_add_u32 s4, s4, s5')
e('s_lshl_b32 s6, s4, 1')
e(f's_load_dword s{DPAIR}, s[14:15], s6')
e(f's_load_dword s{EPO}, s[26:27], {L.EPOCH}')
e(f's_lshr_b32 s5, s{WV}, 1'); e('s_add_u32 s7, s4, s5')
e('s_lshl_b32 s5, s7, 12')
e(f's_add_u32 s{sSK}, s12, s5'); e(f's_addc_u32 s{sSK+1}, s13, 0'); e(f's_mov_b32 s{sSK+2}, 4096'); e(f's_mov_b32 s{sSK+3}, 0x20000')
e(f's_and_b32 vcc_lo, s{WV}, 1')
e('s_lshl_b32 vcc_lo, vcc_lo, 11')
e('v_add_u32 v7, vcc_lo, v5')
e('v_add_u32 v6, -16, v7')
mk_srd(sWS, 26, L.WS_USED); mk_srd(sOUT, 22, 2097152)
mk_srd(sW1, 18, 512*1792*2); mk_srd(sW2, 20, 512*1792*2)
e(f's_lshr_b32 s{RB}, s{G}, 1'); e(f's_lshl_b32 s{RB}, s{RB}, 2'); e(f's_and_b32 s5, s{J}, 3'); e(f's_add_u32 s{RB}, s{RB}, s5')
e(f's_and_b32 s{CS}, s{G}, 1'); e(f's_lshl_b32 s{CS}, s{CS}, 3'); e(f's_lshr_b32 s4, s{J}, 2'); e(f's_add_u32 s{CS}, s{CS}, s4')
e(f's_lshl_b32 s{RT}, s{G}, 2'); e(f's_add_u32 s{RT}, s{RT}, s5'); e(f's_lshr_b32 s{CT}, s2, 5')
e(f's_lshl_b32 s5, s{RB}, 2'); e(f's_add_u32 s5, s5, s{WV}'); e('s_lshl_b32 s5, s5, 15'); e(f's_add_u32 s5, s5, {L.HB}')
e(f's_add_u32 s{sHB}, s26, s5'); e(f's_addc_u32 s{sHB+1}, s27, 0'); e(f's_mov_b32 s{sHB+2}, 32768'); e(f's_mov_b32 s{sHB+3}, 0x20000')
e('v_and_b32 v232, 15, v0')
e('v_lshrrev_b32 v233, 4, v0')
e('v_and_b32 v234, 7, v0'); e('v_lshlrev_b32 v234, 1, v234')
e('v_xor_b32 v235, v233, v234')
e('v_lshlrev_b32 v236, 9, v232')
e(f'v_lshl_add_u32 v237, v235, 3, v236')
e('v_xor_b32 v235, 15, v235')
e(f'v_lshl_add_u32 v236, v235, 3, v236')
e(f'v_add_u32 v236, {TB1}, v236')
e('v_lshrrev_b32 v233, 5, v0'); e('v_and_b32 v234, 7, v0'); e('v_xor_b32 v233, v233, v234')
e('v_lshrrev_b32 v235, 3, v0')
e('v_lshlrev_b32 v238, 7, v235'); e('v_lshl_add_u32 v238, v233, 4, v238')
e(f'v_add_u32 v252, {TB1}, v238')
e('v_lshlrev_b32 v239, 12, v235'); e('v_lshl_add_u32 v239, v234, 4, v239')
e(f's_lshl_b32 s4, s{G}, 18')
e(f's_lshl_b32 s5, s{J}, 7')
e(f's_add_u32 s10, s4, {L.XT}'); e('s_add_u32 s10, s10, s5'); e('s_add_u32 s11, s10, 131072')
e(f's_add_u32 s8, s4, {L.KVR + 4096 - 128}'); e('s_sub_u32 s8, s8, s5'); e('s_add_u32 s9, s8, 131072')
e('v_mov_b32 v251, 0')
WP, KF, VF, ACC, PK = 72, 88, 116, 132, 148
def tap(t, o):
    for cp in range(2):
        acc = ACC + 4*o + 2*cp; kf = KF + 4*(o + 3 - t) + 2*cp; w = WP + 4*t + 2*cp
        if t == 0: e(f'v_pk_mul_f32 {p2(acc)}, {p2(kf)}, {p2(w)}')
        else: e(f'v_pk_fma_f32 {p2(acc)}, {p2(kf)}, {p2(w)}, {p2(acc)}')
e(f's_waitcnt vmcnt({NA + 9})')
for i in range(3, 7):
    for cp in range(2): unpack(KF + 4*i + 2*cp, KF + 4*i + 2*cp + 1, K + 2*i + cp)
e(f's_waitcnt vmcnt({NA + 7})')
for cp in range(2):
    for hf in range(2):
        d0 = SH + 4*cp + 2*hf
        unpack(WP + 0 + 2*cp + hf, WP + 4 + 2*cp + hf, d0)
        unpack(WP + 8 + 2*cp + hf, WP + 12 + 2*cp + hf, d0 + 1)
for t in range(4):
    for o in range(t, 4): tap(t, o)
e(f's_waitcnt vmcnt({NA + 3})')
for o in range(4):
    for cp in range(2): unpack(VF + 4*o + 2*cp, VF + 4*o + 2*cp + 1, V + 2*o + cp)
e(f's_waitcnt vmcnt({NA})')
stamp('kv_arrived')
for i in range(3):
    for cp in range(2): unpack(KF + 4*i + 2*cp, KF + 4*i + 2*cp + 1, K + 2*i + cp)
for t in range(1, 4):
    for o in range(0, t): tap(t, o)
for o in (3, 2, 1, 0):
    for cp in range(2): e(f'v_pk_mul_f32 {p2(ACC+4*o+2*cp)}, {p2(ACC+4*o+2*cp)}, {p2(VF+4*o+2*cp)}')
for i in range(4):
    e(f'v_cvt_pk_bf16_f32 v{PK+2*i}, v{ACC+12+i}, v{ACC+8+i}')
    e(f'v_cvt_pk_bf16_f32 v{PK+2*i+1}, v{ACC+4+i}, v{ACC+i}')
    e(f'ds_write_b64 v236, {p2(PK+2*i)} offset:{128*i}')
e('s_waitcnt lgkmcnt(0)')
e('s_barrier')
e(f'ds_read_b128 v[156:159], v252')
e(f'ds_read_b128 v[160:163], v252 offset:4096')
e(f's_mul_i32 s{TAG}, s{EPO}, 1664525'); e(f's_add_u32 s{TAG}, s{TAG}, 1013904223')
e('s_mov_b32 s4, 0x05040100'); e('s_mov_b32 s5, 0x07060302')
e(f'v_mov_b32 v250, s{TAG}')
e('s_waitcnt lgkmcnt(1)')
e(f'buffer_store_dwordx4 v[156:159], v239, {srd(sWS)}, s8 offen sc1')
e('s_waitcnt lgkmcnt(0)')
e(f'buffer_store_dwordx4 v[160:163], v239, {srd(sWS)}, s9 offen sc1')
stamp('kv_stored')
e(f's_waitcnt vmcnt(4)')
for cp in range(2):
    for hf in range(2):
        i = 2*cp + hf
        e(f'v_perm_b32 v{PK+2*i}, v{X+2+cp}, v{X+cp}, s{4+hf}')
        e(f'v_perm_b32 v{PK+2*i+1}, v{X+6+cp}, v{X+4+cp}, s{4+hf}')
        e(f'ds_write_b64 v237, {p2(PK+2*i)} offset:{TB2+128*i}')
e('s_waitcnt lgkmcnt(0)')
e('s_barrier')
e(f'ds_read_b128 v[164:167], v238 offset:{TB2}')
e(f'ds_read_b128 v[168:171], v238 offset:{TB2+4096}')
e(f's_waitcnt vmcnt(2)')
F = 88
for i in range(4): unpack(F + 2*i, F + 2*i + 1, XR + i)
e('s_waitcnt lgkmcnt(1)')
e(f'buffer_store_dwordx4 v[164:167], v239, {srd(sWS)}, s10 offen sc1')
for i in range(4, 8): unpack(F + 2*i, F + 2*i + 1, XR + i)
e('s_waitcnt lgkmcnt(0)')
e(f'buffer_store_dwordx4 v[168:171], v239, {srd(sWS)}, s11 offen sc1')
e(f'v_pk_add_f32 {p2(104)}, {p2(F)}, {p2(F+2)}'); e(f'v_pk_mul_f32 {p2(106)}, {p2(F)}, {p2(F)}')
e(f'v_pk_fma_f32 {p2(106)}, {p2(F+2)}, {p2(F+2)}, {p2(106)}')
for i in range(2, 8):
    e(f'v_pk_add_f32 {p2(104)}, {p2(104)}, {p2(F+2*i)}'); e(f'v_pk_fma_f32 {p2(106)}, {p2(F+2*i)}, {p2(F+2*i)}, {p2(106)}')
e('v_add_f32 v104, v104, v105'); e('v_add_f32 v105, v106, v107')
for mode in ('quad_perm:[1,0,3,2]', 'quad_perm:[2,3,0,1]', 'row_half_mirror', 'row_mirror'):
    for r in (104, 105): e(f'v_add_f32_dpp v{r}, v{r}, v{r} {mode} row_mask:0xf bank_mask:0xf')
e('v_mov_b32 v106, v104'); e('v_mov_b32 v107, v105')
e('v_permlane16_swap_b32 v104, v106'); e('v_permlane16_swap_b32 v105, v107')
e(f'v_pk_add_f32 {p2(104)}, {p2(104)}, {p2(106)}')
e('v_mul_f32 v104, 0x3b000000, v104'); e('v_mul_f32 v105, 0x3b000000, v105')
e('v_fma_f32 v105, -v104, v104, v105'); e('v_max_f32 v105, 0, v105')
bf16r(104, 104)
rstd_from_var(105)
e('v_and_b32 v106, 1, v1'); e('v_cmp_eq_u32 vcc, 1, v106')
e('v_mul_f32 v104, v104, -v105')
e('v_lshlrev_b32 v106, 4, v106'); e('v_lshrrev_b32 v107, 5, v1'); e('v_lshl_add_u32 v106, v107, 2, v106')
e('v_cndmask_b32 v104, v105, v104, vcc')
e('s_lshl_b32 s4, s2, 6'); e(f's_lshr_b32 s5, s{WV}, 1'); e('s_lshl_b32 s5, s5, 5'); e('s_add_u32 s4, s4, s5')
e(f's_and_b32 s5, s{WV}, 1'); e('s_lshl_b32 s5, s5, 3'); e('s_add_u32 s4, s4, s5'); e(f's_add_u32 s4, s4, {L.STATS}')
e('s_mov_b32 exec_lo, 3'); e('s_mov_b32 exec_hi, 3')
e(f'buffer_store_dword v104, v106, {srd(sWS)}, s4 offen sc1')
e('s_mov_b64 exec, -1')
e(f'buffer_load_dwordx4 v[{SKW}:{SKW+3}], v6, {srd(sSK)}, 0 offen{NT}')
e(f'buffer_load_dwordx4 v[{SKW+4}:{SKW+7}], v7, {srd(sSK)}, 0 offen{NT}')
e(f'buffer_load_dwordx4 v[{SKW+8}:{SKW+11}], v7, {srd(sSK)}, 0 offen offset:1008{NT}')
e(f'buffer_load_dwordx4 v[{SKW+12}:{SKW+15}], v7, {srd(sSK)}, 0 offen offset:1024{NT}')
e('s_waitcnt vmcnt(7)')
e('s_barrier')
wg_flag(L.F1)
stamp('flag1')
GT = int(opt.get('gt', 1))
if GT: gtouch()
e(f's_lshr_b32 s6, s{WV}, 1'); e(f's_mul_i32 s6, s6, {UPITCH}'); e(f's_add_u32 s6, s6, {U0}')
e('v_and_b32 v8, 15, v1'); e('v_lshrrev_b32 v9, 4, v1')
e('v_and_b32 v10, 7, v1'); e(f's_movk_i32 s4, {KPITCH}'); e('v_mul_u32_u24 v10, s4, v10')
e('v_bfe_u32 v11, v1, 3, 1'); e('v_lshl_add_u32 v10, v11, 8, v10')
e('v_lshlrev_b32 v11, 4, v9'); e('v_sub_u32 v10, v10, v11')
e(f's_lshr_b32 s4, s{WV}, 1'); e(f's_mul_i32 s5, s4, {KCH}'); e(f's_add_u32 s5, s5, {KC0}')
e('v_add_u32 v249, s5, v7')
e('s_add_u32 s5, s5, 48')
e('v_add_u32 v10, s5, v10')
e('v_add_u32 v11, v8, v9'); e('v_lshlrev_b32 v11, 4, v11'); e('s_add_u32 s5, s6, 288'); e('v_sub_u32 v11, s5, v11')
e('v_lshrrev_b32 v12, 5, v1'); e('v_lshlrev_b32 v12, 7, v12'); e('v_lshl_add_u32 v12, v8, 3, v12')
e('v_bfe_u32 v13, v1, 4, 1'); e('v_lshl_add_u32 v12, v13, 2, v12')
e('v_lshlrev_b32 v13, 1, v12')
e('v_lshlrev_b32 v14, 3, v12')
e('v_lshlrev_b32 v16, 7, v1'); e(f'v_add_u32 v16, {L.F1B}, v16')
e(f's_and_b32 s4, s{WV}, 1'); e('s_lshl_b32 s8, s4, 1'); e('s_sub_u32 s9, 6, s8')
e('s_add_u32 s5, s6, 4088 - 512'); e('v_sub_u32 v15, s5, v13')
e('s_lshl_b32 s4, s8, 9'); e('v_subrev_u32 v18, s4, v15'); e('s_lshl_b32 s4, s9, 9'); e('v_subrev_u32 v19, s4, v15')
e('s_lshl_b32 s10, s7, 12'); e(f's_add_u32 s10, s10, {L.XT}')
e('s_lshl_b32 s11, s7, 6'); e(f's_add_u32 s11, s11, {L.HB}')
for pi in range(2):
    e(f's_lshl_b32 s4, s{8+pi}, 9'); e(f's_add_u32 s{32+pi}, s4, s10')
    e(f's_lshl_b32 s4, s{8+pi}, 11'); e(f's_add_u32 s{34+pi}, s4, {L.STATS}')
    e(f's_lshl_b32 s4, s{8+pi}, 18'); e(f's_add_u32 s{36+pi}, s4, s11')
e('v_bfe_u32 v17, v1, 4, 1'); e('v_lshlrev_b32 v17, 3, v17'); e('v_lshrrev_b32 v24, 5, v1'); e('v_lshl_add_u32 v17, v24, 2, v17')
e('v_bfe_u32 v24, v1, 2, 2'); e('v_add_u32 v17, v17, v24'); e('v_lshlrev_b32 v17, 15, v17')
e('v_and_b32 v24, 3, v1'); e('v_lshl_add_u32 v17, v24, 4, v17')
e('v_and_b32 v24, 31, v1'); e('v_lshlrev_b32 v24, 10, v24')
e(f's_lshl_b32 s4, s{G}, 7'); e(f's_add_u32 s4, s4, {L.F1}'); e('v_add_u32 v24, s4, v24')
for n in range(4): e(f'v_mov_b32 v{28+n}, 0')
e('v_lshrrev_b32 v22, 4, v0'); e(f's_movk_i32 s4, {KPITCH}'); e('v_and_b32 v23, 15, v0'); e('v_lshlrev_b32 v23, 4, v23')
e('v_mad_u32_u24 v22, v22, s4, v23')
e(f'v_add_u32 v22, {KC0}, v22')
e('ds_write_b128 v22, v[28:31]')
e(f'v_add_u32 v22, {U0 + 4096}, v23')
e('s_mov_b64 exec, 0xffff')
e('ds_write_b128 v22, v[28:31]'); e(f'ds_write_b128 v22, v[28:31] offset:{UPITCH}')
e('s_mov_b64 exec, -1')
wait_role(4, 4 + 2*GT)
e('s_barrier')
wg_flag(L.F1B, True)
stamp('flag1b')
ONES = 136; CF = 140
CACC, EX, EKV, FB, EST = 32, 48, 56, 64, 192
for r in range(16): e(f'v_mov_b32 v{CACC+r}, 0')
W1O = 240
e('s_movk_i32 s4, 4682'); e('s_movk_i32 s5, 3360')
for i in range(7):
    e(f'v_add_u32 v{W1O+i}, {64*i}, v1')
    e(f'v_mul_u32_u24 v31, s4, v{W1O+i}'); e('v_lshrrev_b32 v31, 16, v31')
    e(f'v_lshlrev_b32 v{W1O+i}, 4, v{W1O+i}'); e(f'v_mad_u32_u24 v{W1O+i}, v31, s5, v{W1O+i}')
e(f's_mul_i32 s44, s{WV}, {32*3584}'); e(f's_mul_i32 s4, s{CS}, 224'); e('s_add_u32 s44, s44, s4')
e(f's_mul_i32 s46, s{WV}, 7168')
e('v_lshrrev_b32 v20, 3, v1'); e('v_lshlrev_b32 v20, 10, v20')
e('v_bfe_u32 v21, v1, 4, 1'); e('v_lshlrev_b32 v21, 2, v21'); e('v_and_b32 v22, 7, v1'); e('v_xor_b32 v21, v21, v22')
e('v_lshl_add_u32 v20, v21, 4, v20')
e('v_lshrrev_b32 v21, 5, v1'); e('v_lshlrev_b32 v21, 3, v21'); e('v_bfe_u32 v22, v1, 2, 2'); e('v_add_u32 v21, v21, v22')
e('v_lshlrev_b32 v21, 7, v21')
e('v_bfe_u32 v22, v1, 4, 1'); e('v_lshl_add_u32 v21, v22, 5, v21')
e('v_and_b32 v22, 3, v1'); e('v_lshl_add_u32 v21, v22, 3, v21')
e('v_bfe_u32 v22, v1, 3, 1'); e('v_lshl_add_u32 v23, v22, 6, v21')
e(f's_mul_i32 s29, s{WV}, {448*1024}'); e(f's_lshl_b32 s4, s{CT}, 7'); e('s_add_u32 s29, s29, s4')
e('s_movk_i32 s4, 4682'); e('v_mul_u32_u24 v21, s4, v1'); e('v_lshrrev_b32 v21, 16, v21'); e('s_movk_i32 s4, 1792'); e('v_mul_u32_u24 v21, s4, v21')
e('v_lshlrev_b32 v22, 7, v1'); e('v_add_u32 v21, v21, v22')
e(f's_lshl_b32 s4, s{J}, 2'); e(f's_add_u32 s4, s4, s{WV}'); e(f's_mul_i32 s30, s4, {4*3584}'); e(f's_mul_i32 s31, s4, {14*1024}')
e(f's_and_b32 s4, s{G}, 1'); e('s_mul_i32 s4, s4, 1792'); e('s_add_u32 s30, s30, s4')
e(f's_cmp_ge_u32 s{WV}, 2'); e('s_cbranch_scc1 L_NOU')
e(f's_lshl_b32 s4, s{G}, 6'); e(f's_lshl_b32 s5, s{J}, 1'); e('s_add_u32 s4, s4, s5'); e(f's_add_u32 s4, s4, s{WV}'); e('s_lshl_b32 s4, s4, 12'); e(f's_add_u32 s41, s4, {L.KVR}')
e(f's_mul_i32 s42, s{WV}, {UPITCH}'); e(f's_add_u32 s42, s42, {U0}')
e('s_mov_b64 vcc, -1')
poll([(24, 0)], 25)
stamp('go1')
e('s_mov_b32 m0, s42')
for i in range(4): e(f'buffer_load_dwordx4 v5, {srd(sWS)}, s41 offen offset:{1024*i} sc1 lds')
e('s_branch L_U2')
e('L_NOU:')
e(f's_waitcnt vmcnt({2*GT})')
e('L_U2:')
for i in range(2):
    W = SKW + 8*i; O = 88 + 24*i; O2 = 96 + 24*i; M = 104 + 24*i
    for sh in (4, 8):
        e(f'ds_write_b128 v249, v[{W+sh//2}:{W+sh//2+3}] offset:{(sh-1)*KPITCH + 256 + 1024*i}')
    for n in range(6): e(f'v_alignbit_b32 v{O+n}, v{W+n+1}, v{W+n}, 16')
    for n in range(6): e(f'v_alignbit_b32 v{O2+n}, v{W+n+2}, v{W+n+1}, 16')
    for n in range(6): e(f'v_mov_b32 v{M+n}, v{W+n+1}')
    src = {1: O, 2: M, 3: O2, 5: O+2, 6: M+2, 7: O2+2}
    for sh in (1, 5, 3, 7, 2, 6):
        e(f'ds_write_b128 v249, v[{src[sh]}:{src[sh]+3}] offset:{(sh-1)*KPITCH + 256 + 1024*i}')
PX4 = [(16, 'x4')]*4
def epi_loads():
    r = []
    for ti in range(4):
        pi, tt = divmod(ti, 2)
        r.append(f'buffer_load_dwordx2 v[{EX+2*ti}:{EX+2*ti+1}], v13, {srd(sWS)}, s{32+pi} offen offset:{512*tt} sc1')
        r.append(f'buffer_load_dwordx4 v[{EST+8*ti}:{EST+8*ti+3}], v14, {srd(sWS)}, s{34+pi} offen offset:{2048*tt} sc1')
        r.append(f'buffer_load_dwordx4 v[{EST+8*ti+4}:{EST+8*ti+7}], v14, {srd(sWS)}, s{34+pi} offen offset:{2048*tt+16} sc1')
    return r
wait_role(0, 63)
e('s_waitcnt lgkmcnt(0)')
e('s_barrier')
poll_issue(PX4, 26)
stamp('u_landed')
def w1_step(q):
    g = []
    for i in range(7):
        x = []
        if i == 0: x.append(f's_add_u32 s45, s44, {4*q*32*3584}')
        x += [f's_add_u32 m0, s46, {4*q*7168 + 1024*i}', f'buffer_load_dwordx4 v{W1O+i}, {srd(sW1)}, s45 offen{NTW} lds']
        g.append(x)
    return g
TCH = int(opt.get('tch', 1))
PCHK = int(opt.get('pchk', 2))
def conv_role(tiles, nf):
    cnt = {'pre': 0, 'post': 0}
    pairs = [(a, b - a, ti) for ti, b in enumerate(tiles) for a in range(b + 1)]
    pairs.sort(key=lambda p: (max(p[0], p[1]), p[0]))
    def reads(phi):
        st = phi & 1; r = []
        for i in range(nf):
            r.append(f'ds_read_b128 v[{FB+64*st+4*i}:{FB+64*st+4*i+3}], v10 offset:{512*i + 64*phi}')
            r.append(f'ds_read_b128 v[{FB+64*st+32+4*i}:{FB+64*st+32+4*i+3}], v11 offset:{512*(7-i) + 64*phi}')
        return r
    for i, r in enumerate(reads(0)): e(r)
    for phi in range(8):
        st = phi & 1
        mf = []
        for (a, c, ti) in pairs:
            ka = FB + 64*st + 4*a; uc = FB + 64*st + 32 + 4*c; ac = CACC + 4*ti
            mf.append(f'v_mfma_f32_16x16x32_bf16 v[{ac}:{ac+3}], v[{ka}:{ka+3}], v[{uc}:{uc+3}], v[{ac}:{ac+3}]')
        if phi == 0:
            done = -1; nnew = 0
            fill = spread(18, reads(1), start=4, per=2)
            for i, x in enumerate(mf):
                mx = max(pairs[i][0], pairs[i][1])
                if mx > done:
                    done = mx
                    e(f's_waitcnt lgkmcnt({min(15, 2*(nf-1-mx) + nnew)})')
                e(x)
                for y in fill.get(i, []): e(y); nnew += 1
            continue
        e('s_waitcnt lgkmcnt(0)')
        if phi < 7: fill = spread(18, reads(phi + 1), per=2)
        else: fill = spread(18, [f'ds_read_b64 v[{EKV+2*ti}:{EKV+2*ti+1}], v{18+ti//2} offset:{512*(1-ti%2)}' for ti in range(4)], per=1)
        if phi == PCHK + 1:
            for k, x in enumerate(epi_loads()): fill.setdefault(6 + k, []).append(x)
        for k in range(3):
            if TPOS[k] == phi:
                fill.setdefault(10 + k, []).extend(touch(k)); cnt['pre' if phi <= PCHK else 'post'] += 1
        weave(mf, fill)
        if phi == PCHK:
            poll(PX4, 26, first_issued=True, wait=cnt['pre'])
    global NPOST
    NPOST = cnt['post']
e(f's_bitcmp1_b32 s{WV}, 0'); e('s_cbranch_scc1 L_ROLEB')
conv_role([0, 1, 6, 7], 8)
e('s_branch L_CONVDONE')
e('L_ROLEB:')
conv_role([2, 3, 4, 5], 6)
e('L_CONVDONE:')
stamp('conv_done')
e(f's_waitcnt vmcnt({NPOST})')
e(f's_lshr_b32 s4, s{WV}, 1'); e('s_lshl_b32 s4, s4, 4'); e(f's_lshr_b32 s4, s{DPAIR}, s4'); e('s_lshl_b32 s4, s4, 16'); e('s_mov_b32 s5, s4')
T0 = 64; HP = 128
for ti in range(4):
    t = T0 + 16*ti
    unpack(t, t+1, EX+2*ti); unpack(t+2, t+3, EX+2*ti+1)
    for hh in range(2):
        e(f'v_pk_fma_f32 {p2(t+4+2*hh)}, {p2(t+2*hh)}, {p2(EST+8*ti+2*hh)}, {p2(EST+8*ti+4+2*hh)}')
e('s_waitcnt lgkmcnt(0)')
for ti in range(4):
    ac = CACC + 4*ti; t = T0 + 16*ti
    unpack(t+9, t+8, EKV+2*ti+1); unpack(t+11, t+10, EKV+2*ti)
    for hh in range(2): e(f'v_pk_fma_f32 {p2(ac+2*hh)}, {p2(t+8+2*hh)}, s[4:5], {p2(ac+2*hh)}')
    for hh in range(2): e(f'v_pk_fma_f32 {p2(t+4+2*hh)}, {p2(t+4+2*hh)}, {p2(ac+2*hh)}, {p2(t+2*hh)}')
    for hh in range(2): e(f'v_cvt_pk_bf16_f32 v{HP+2*ti+hh}, v{t+4+2*hh}, v{t+5+2*hh}')
    if ti & 1:
        b = HP + 2*(ti - 1)
        e(f'v_permlane16_swap_b32 v{b}, v{b+2}'); e(f'v_permlane16_swap_b32 v{b+1}, v{b+3}')
        e(f'buffer_store_dwordx4 v[{b}:{b+3}], v17, {srd(sWS)}, s{36+ti//2} offen sc1')
stamp('h_stored')
ACC1, S1, S2, FR, C1 = 64, 120, 128, 140, 212
vWa, vWb, vH0, vH1, vHD = 8, 9, 10, 11, 12
for g_ in w1_step(0) + w1_step(1):
    for x in g_: e(x)
e('v_lshrrev_b32 v13, 2, v1'); e('v_and_b32 v15, 3, v1')
e('s_movk_i32 s4, 224'); e(f'v_mul_u32_u24 v{vWa}, s4, v13'); e(f'v_lshl_add_u32 v{vWa}, v15, 3, v{vWa}'); e(f'v_add_u32 v{vWb}, {8*7168}, v{vWa}')
e(f'v_lshlrev_b32 v{vH0}, 6, v13'); e(f'v_lshl_add_u32 v{vH0}, v15, 3, v{vH0}'); e('v_bfe_u32 v15, v1, 4, 1'); e('v_lshlrev_b32 v15, 5, v15'); e(f'v_xor_b32 v{vH0}, v{vH0}, v15')
e(f's_mul_i32 s12, s{WV}, {RINGW}'); e(f's_add_u32 s12, s12, {RING}')
e(f'v_add_u32 v{vH0}, s12, v{vH0}'); e(f'v_xor_b32 v{vH1}, 32, v{vH0}')
e(f'v_xor_b32 v{vHD}, v5, v15')
for r in range(4): e(f'v_mov_b32 v{ONES+r}, 0x3f803f80')
e(f'v_add_u32 v13, s46, v{vWa}'); e(f'v_add_u32 v14, s46, v{vWb}')
e('v_lshlrev_b32 v16, 7, v0'); e(f'v_add_u32 v16, {L.F2}, v16')
C1S = RING + NSLOT*2048
e('v_and_b32 v17, 48, v1'); e(f'v_add_u32 v17, {C1S}, v17'); e(f's_mul_i32 s4, s{WV}, 448'); e('v_add_u32 v18, s4, v17')
w2n = [0]
def w2_dma(n, base):
    for k in range(2*n):
        e(f's_add_u32 m0, s{base}, {1024*k}')
        e(f'buffer_load_dwordx4 v20, {srd(sW2)}, s29 offen{NTW} lds')
        e('s_add_u32 s29, s29, 8192')
def w2_read(n):
    ks0 = w2n[0]; w2n[0] += n
    for k in range(n):
        for dt in range(2):
            for x in range(2):
                a = 8*(ks0+k) + 4*dt + 2*x
                e(f'ds_read_b64_tr_b16 a[{a}:{a+1}], v{21+dt} offset:{2048*k + 512*x}')
    e('s_waitcnt lgkmcnt(0)')
def c1_part(qs, first):
    for n, q in enumerate(qs):
        b = FR + 36*(n & 1)
        for t in range(7):
            for x in range(2):
                e(f'ds_read_b64_tr_b16 v[{b+4*t+2*x}:{b+4*t+2*x+1}], v{13 + q//2} offset:{4*7168*(q%2) + 3584*x + 32*t}')
    for n, q in enumerate(qs):
        b = FR + 36*(n & 1)
        e(f's_waitcnt lgkmcnt({14*(len(qs)-1-n)})')
        for t in range(7):
            c = '0' if (first and n == 0) else f'v[{C1+4*t}:{C1+4*t+3}]'
            e(f'v_mfma_f32_16x16x32_bf16 v[{C1+4*t}:{C1+4*t+3}], v[{b+4*t}:{b+4*t+3}], v[{ONES}:{ONES+3}], {c}')
for k in range(3):
    if TPOS[k] == 8:
        for x in touch(k): e(x)
NT8 = TPOS.count(8)
e(f's_waitcnt vmcnt({14 + NT8})')
e('s_barrier')
wg_flag(L.F2)
stamp('flag2')
for g_ in w1_step(2) + w1_step(3):
    for x in g_: e(x)
NR = int(opt.get('nr', 1))
e('v_add_u32 v21, s12, v23'); e('v_xor_b32 v22, 64, v21')
if NR: w2_dma(5, 12)
e(f's_waitcnt vmcnt({14 + 10*min(NR,1)})')
c1_part([0, 1], True)
e(f's_waitcnt vmcnt({10*min(NR,1)})')
stamp('w1_landed')
c1_part([2, 3], False)
e('s_mov_b32 exec_lo, 0x00010001'); e('s_mov_b32 exec_hi, 0x00010001')
for t in range(7): e(f'ds_write_b128 v18, v[{C1+4*t}:{C1+4*t+3}] offset:{64*t}')
e('s_mov_b64 exec, -1')
if NR == 0: poll_issue([(16, 0)], 25)
for r in range(NR):
    last = r == NR - 1
    if last: poll_issue([(16, 0)], 25)
    e(f's_waitcnt vmcnt({1 if last else 0})')
    w2_read(5)
    if not last: w2_dma(5, 12)
stamp('w2_staged')
poll([(16, 0)], 25, first_issued=True)
e('s_waitcnt lgkmcnt(0)')
e('s_barrier')
stamp('go2')
def h_dma(i):
    return [f's_add_u32 m0, s12, {2048*(i % NSLOT)}', f's_movk_i32 s9, {2048*i}',
            f'buffer_load_dwordx4 v{vHD}, {srd(sHB)}, s9 offen sc1 lds',
            f'buffer_load_dwordx4 v{vHD}, {srd(sHB)}, s9 offen offset:1024 sc1 lds']
LH = int(opt.get('lh', 4))
for i in range(LH):
    for x in h_dma(i): e(x)
for w in range(4):
    dst = C1 if w == 0 else FR + 28*((w-1) % 2)
    for t in range(7): e(f'ds_read_b128 v[{dst+4*t}:{dst+4*t+3}], v17 offset:{448*w + 64*t}')
    if w >= 1:
        e(f's_waitcnt lgkmcnt(7)')
        if w >= 2:
            src = FR + 28*((w-2) % 2)
            for r in range(0, 28, 2): e(f'v_pk_add_f32 {p2(C1+r)}, {p2(C1+r)}, {p2(src+r)}')
e('s_waitcnt lgkmcnt(0)')
for r in range(0, 28, 2): e(f'v_pk_add_f32 {p2(C1+r)}, {p2(C1+r)}, {p2(FR+r)}')
e(f's_and_b32 s13, s{CS}, 7')
NG = int(opt.get('ng', 4)); GL = -(-(28 - w2n[0])*4 // NG) if NG else 0
e('v_lshlrev_b32 v19, 12, v1'); e(f's_and_b32 s4, s{RT}, 3'); e('s_lshl_b32 s4, s4, 10'); e('s_add_u32 s31, s29, s4')
GPOS = [int(x) for x in opt.get('gpos', '0,2,4,6,8,10,12,14').split(',')][:NG]
def gt2():
    m = (1 << GL) - 1
    return [f's_mov_b32 exec_lo, {m & 0xffffffff}', f's_mov_b32 exec_hi, {m >> 32}', f'buffer_load_dword v6, v19, {srd(sW2)}, s31 offen', 's_mov_b64 exec, -1', f's_add_u32 s31, s31, {GL*4096}']
def g1_w(i):
    st = i & 1
    return [f'ds_read_b64_tr_b16 v[{FR+36*st+8+4*t+2*x}:{FR+36*st+8+4*t+2*x+1}], v{vWa if i < 8 else vWb} offset:{7168*(i%8) + 3584*x + 32*t}' for t in range(7) for x in range(2)]
def g1_h(i):
    st = i & 1
    return [f'ds_read_b64_tr_b16 v[{FR+36*st+4*s+2*x}:{FR+36*st+4*s+2*x+1}], v{vH0+s} offset:{2048*(i % NSLOT) + 1024*x}' for s in range(2) for x in range(2)]
for r in g1_w(0): e(r)
vq = ['h']*(2*LH)
def vm_wait(step, q):
    last = max(k for k, x in enumerate(q) if x == ('h', step))
    return len(q) - 1 - last
q = [('h', i) for i in range(LH) for _ in range(2)]
e(f's_waitcnt vmcnt({vm_wait(0, q)})')
for r in g1_h(0): e(r)
ool = []
for i in range(16):
    b = FR + 36*(i & 1)
    mf = []
    for t in range(7):
        for s in range(2):
            ac = ACC1 + 8*t + 4*s
            mf.append(f'v_mfma_f32_16x16x32_bf16 v[{ac}:{ac+3}], v[{b+8+4*t}:{b+8+4*t+3}], v[{b+4*s}:{b+4*s+3}], {"0" if i == 0 else f"v[{ac}:{ac+3}]"}')
    for s in range(2):
        mf.append(f'v_mfma_f32_16x16x32_bf16 v[{S1+4*s}:{S1+4*s+3}], v[{ONES}:{ONES+3}], v[{b+4*s}:{b+4*s+3}], {"0" if i == 0 else f"v[{S1+4*s}:{S1+4*s+3}]"}')
    fill = {}
    if i < 15:
        fill[0] = [f's_waitcnt vmcnt({vm_wait(i + 1, q)})'] + g1_h(i + 1)[:1]
        spread(16, g1_h(i + 1)[1:] + g1_w(i + 1), start=1, per=2, fill=fill)
    if i + LH < 16:
        d = h_dma(i + LH)
        fill.setdefault(10, []).extend(d[:2]); fill.setdefault(11, []).extend(d[2:3]); fill.setdefault(13, []).extend(d[3:])
        q += [('h', i + LH)]*2
    if i in GPOS:
        fill.setdefault(12, []).extend(gt2()); q.insert(len(q) - (1 if i + LH < 16 else 0), ('t', 0))
    fill.setdefault(14, []).append(f's_cmp_eq_u32 s13, {i//2}')
    fill.setdefault(15, []).extend([f's_cbranch_scc1 L_S2_{i}', f'L_S2R_{i}:'])
    ool.append((i, b))
    e('s_waitcnt lgkmcnt(0)')
    weave(mf, fill)
stamp('g1_done')
e('s_barrier')
e(f's_lshl_b32 s8, s{RB}, 2'); e(f's_add_u32 s8, s8, s{WV}'); e('s_mul_i32 s4, s8, 112'); e(f's_mul_i32 s5, s{CS}, 7'); e('s_add_u32 s4, s4, s5')
e('s_lshl_b32 s4, s4, 10'); e(f's_add_u32 s4, s4, {L.H1F}'); e('s_add_u32 s5, s4, 4096'); e('s_mov_b32 s43, s4')
for s in range(2): e(f'v_mul_f32 v{26+s}, 0x3b000000, v{S1+4*s}')
for s in range(2): bf16r(24 + s, 26 + s)
for t in range(7):
    o = FR + 4*t
    for s in range(2):
        ac = ACC1 + 8*t + 4*s
        sel = f'op_sel:[0,{s},0] op_sel_hi:[1,{s},1] neg_lo:[0,1,0] neg_hi:[0,1,0]'
        for hh in range(2): e(f'v_pk_fma_f32 {p2(ac+2*hh)}, {p2(C1+4*t+2*hh)}, v[24:25], {p2(ac+2*hh)} {sel}')
    for s in range(2):
        ac = ACC1 + 8*t + 4*s
        for hh in range(2): e(f'v_cvt_pk_bf16_f32 v{o+2*s+hh}, v{ac+2*hh}, v{ac+2*hh+1}')
    for r in range(4): e(f'v_pk_max_i16 v{o+r}, v{o+r}, 0')
    e(f'v_permlane16_swap_b32 v{o}, v{o+2}'); e(f'v_permlane16_swap_b32 v{o+1}, v{o+3}')
    e(f'buffer_store_dwordx4 v[{o}:{o+3}], v5, {srd(sWS)}, s{4 + t//4} offen offset:{1024*(t%4)} sc1')
e('v_and_b32 v13, 3, v1')
e('v_cmp_eq_u32 s[10:11], 1, v13'); e('v_cmp_eq_u32 s[32:33], 2, v13'); e('v_cmp_eq_u32 s[34:35], 3, v13')
e(f's_bitcmp1_b32 s{CS}, 3'); e('s_cselect_b64 vcc, -1, 0')
for r in range(4): e(f'v_cndmask_b32 v{S2+r}, v{S2+r}, v{S2+4+r}, vcc')
e(f'v_cndmask_b32 v28, v{S1}, v{S1+4}, vcc'); e('v_cndmask_b32 v29, v26, v27, vcc')
e(f'v_cndmask_b32 v30, v{S2}, v{S2+1}, s[10:11]'); e('v_mul_f32 v28, 0xbe000000, v28')
e(f'v_cndmask_b32 v30, v30, v{S2+2}, s[32:33]'); e('v_and_b32 v13, 15, v1')
e(f'v_cndmask_b32 v30, v30, v{S2+3}, s[34:35]'); e('v_lshlrev_b32 v13, 2, v13')
e('v_fmac_f32 v30, v28, v29')
e('s_lshl_b32 s9, s8, 10'); e(f's_and_b32 s5, s{CS}, 7'); e('s_lshl_b32 s5, s5, 7'); e('s_add_u32 s9, s9, s5')
e(f's_lshr_b32 s5, s{CS}, 3'); e('s_lshl_b32 s5, s5, 6'); e('s_add_u32 s9, s9, s5'); e(f's_add_u32 s9, s9, {L.PVAR}')
e('s_mov_b32 exec_lo, 0x00F0000F'); e('s_mov_b32 exec_hi, 0xF0000F00')
e(f'buffer_store_dword v30, v13, {srd(sWS)}, s9 offen sc1')
e('s_mov_b64 exec, -1')
NREM = 28 - w2n[0]
e(f's_lshl_b32 s40, s{WV}, 14'); e(f's_mul_i32 s41, s{WV}, 12288'); e('s_add_u32 s41, s41, 65536'); e('s_add_u32 s42, s12, 2048')
n1 = min(NREM, 8); n2 = min(NREM - n1, 6); n3 = min(NREM - n1 - n2, 4); n4 = NREM - n1 - n2 - n3
parts = [(n1, 40), (n2, 41), (n3, 42)]
w2_dma(n1, 40)
e(f's_lshl_b32 s4, s{RB}, 4'); e(f's_add_u32 s4, s4, s{CS}'); e('s_lshl_b32 s4, s4, 2'); e(f's_add_u32 s4, s4, s{WV}'); e('s_lshl_b32 s4, s4, 7'); e(f's_add_u32 s4, s4, {L.F3}')
e(f's_lshl_b32 s8, s{RT}, 1'); e(f's_lshr_b32 s5, s{WV}, 1'); e('s_mov_b32 s9, 0'); e('s_xor_b32 s5, s5, s9'); e('s_add_u32 s8, s8, s5')
e('s_lshl_b32 s10, s8, 15')
e(f's_lshl_b32 s5, s{CT}, 12'); e('s_add_u32 s10, s10, s5'); e(f's_and_b32 s5, s{WV}, 1'); e('s_lshl_b32 s5, s5, 11'); e('s_add_u32 s10, s10, s5'); e(f's_add_u32 s10, s10, {L.HB}')
e(f's_lshr_b32 s11, s{RT}, 1'); e('s_lshl_b32 s11, s11, 6'); e(f's_lshl_b32 s5, s{WV}, 4'); e('s_add_u32 s11, s11, s5')
e(f's_and_b32 s5, s{RT}, 1'); e('s_lshl_b32 s5, s5, 1'); e('s_add_u32 s11, s11, s5'); e('s_lshl_b32 s11, s11, 7'); e(f's_add_u32 s11, s11, {L.F3}')
e('v_and_b32 v24, 3, v1'); e('v_lshlrev_b32 v24, 9, v24'); e('v_bfe_u32 v25, v1, 2, 1'); e('v_lshl_add_u32 v24, v25, 7, v24'); e('v_add_u32 v24, s11, v24')
e(f's_waitcnt vmcnt({2*n1})')
flag_store(4)
stamp('flag3')
e(f's_or_b32 s4, s2, s{WV}'); e('s_cmp_lg_u32 s4, 0')
lab = e.label('NE'); e(f's_cbranch_scc1 {lab}')
e(f's_mov_b32 s4, {L.EPOCH}')
flag_store(4)
e(f'{lab}:')
if int(opt.get('h1t', 1)):
    e('v_lshlrev_b32 v254, 7, v1'); e('s_mov_b32 exec_hi, 0xffffff')
    e(f'buffer_load_dword v7, v254, {srd(sWS)}, s43 offen sc1')
    e('s_mov_b64 exec, -1')
    NH = 1
else: NH = 0
for n, b_ in parts[1:]: w2_dma(n, b_)
e('s_mov_b32 m0, s12')
e(f'buffer_load_dwordx4 v5, {srd(sWS)}, s10 offen sc1 lds')
e(f'buffer_load_dwordx4 v5, {srd(sWS)}, s10 offen offset:1024 sc1 lds')
e(f's_lshl_b32 s4, s{RT}, 1'); e('s_add_u32 s4, s4, s9'); e(f's_mul_i32 s4, s4, {112*1024}')
e(f's_mul_i32 s5, s{WV}, {28*1024}'); e(f's_add_u32 s5, s5, {L.H1F}'); e('s_add_u32 s32, s4, s5')
e(f's_lshl_b32 s4, s{RT}, 1'); e('s_xor_b32 s33, s9, 1'); e('s_add_u32 s4, s4, s33'); e(f's_mul_i32 s4, s4, {112*1024}'); e('s_add_u32 s33, s4, s5')
e('v_lshrrev_b32 v26, 5, v1'); e('v_xor_b32 v26, s9, v26'); e('v_lshlrev_b32 v26, 10, v26'); e('v_and_b32 v27, 15, v1'); e('v_lshl_add_u32 v26, v27, 2, v26')
e('v_bfe_u32 v27, v1, 4, 1'); e('v_lshl_add_u32 v26, v27, 8, v26')
e(f's_lshl_b32 s35, s{RT}, 11'); e(f's_and_b32 s5, s{WV}, 1'); e('s_lshl_b32 s5, s5, 9'); e('s_add_u32 s35, s35, s5')
e(f's_lshr_b32 s5, s{WV}, 1'); e('s_lshl_b32 s5, s5, 6'); e('s_add_u32 s35, s35, s5'); e(f's_add_u32 s35, s35, {L.PVAR}')
e('v_add_u32 v21, s40, v23'); e('v_xor_b32 v22, 64, v21')
e(f's_waitcnt vmcnt({NH + 2*n2 + 2*n3 + 2})')
w2_read(n1)
if n4: w2_dma(n4, 40)
poll_issue([(24, 0)], 25)
if n2:
    e('v_add_u32 v21, s41, v23'); e('v_xor_b32 v22, 64, v21')
    e(f's_waitcnt vmcnt({2*n3 + 2 + 2*n4 + 1})')
    w2_read(n2)
if n3:
    e('v_add_u32 v21, s42, v23'); e('v_xor_b32 v22, 64, v21')
    e(f's_waitcnt vmcnt({2 + 2*n4 + 1})')
    w2_read(n3)
if n4:
    e('v_add_u32 v21, s40, v23'); e('v_xor_b32 v22, 64, v21')
    e(f's_waitcnt vmcnt(1)')
    w2_read(n4)
stamp('w2_done')
poll([(24, 0)], 25, first_issued=True)
stamp('go3')
LA = int(opt.get('la', 8)); NB = LA + 2; BF = 32
PVS = RING + NSLOT*2048
e(f'buffer_load_dword v28, v26, {srd(sWS)}, s35 offen sc1'); e(f'buffer_load_dword v29, v26, {srd(sWS)}, s35 offen offset:128 sc1')
def g2_load(i):
    p, ks = divmod(i, 28)
    r = BF + 4*(i % NB)
    if ks % 4 == 0: e(f's_add_u32 s37, s{32+p}, {1024*ks}')
    e(f'buffer_load_dwordx4 v[{r}:{r+3}], v5, {srd(sWS)}, s37 offen offset:{1024*(ks%4)} sc1')
for i in range(LA): g2_load(i)
e(f's_lshl_b32 s4, s{WV}, 14'); e('v_add_u32 v8, s4, v5')
e(f's_lshl_b32 s4, s{WV}, 8'); e(f's_add_u32 s4, s4, {PVS}'); e('v_lshl_add_u32 v9, v1, 2, s4')
issued = LA
wr = []
RU = 160
for i in range(56):
    p, ks = divmod(i, 28)
    r = BF + 4*(i % NB)
    e(f's_waitcnt vmcnt({issued - i - 1})')
    for dt in range(2):
        acc = f'a[{224+16*dt}:{239+16*dt}]' if p == 0 else f'v[{224+16*dt}:{239+16*dt}]'
        a = 8*ks + 4*dt
        e(f'v_mfma_f32_32x32x16_bf16 {acc}, a[{a}:{a+3}], v[{r}:{r+3}], {"0" if ks == 0 else acc}')
        if dt == 0 and issued < 56:
            g2_load(issued); issued += 1
    if i == 0:
        e('v_add_f32 v28, v28, v29'); e('ds_write_b32 v9, v28')
    if i == 29:
        wr = [f'ds_write_b128 v8, a[{224+4*q}:{227+4*q}] offset:{1024*q}' for q in range(8)]
    if wr: e(wr.pop(0))
    if i == 40:
        e('v_lshrrev_b32 v9, 5, v1'); e('v_lshlrev_b32 v9, 2, v9'); e('v_bfe_u32 v10, v1, 2, 2'); e('v_add_u32 v9, v9, v10'); e('v_lshlrev_b32 v9, 6, v9')
    if i == 41:
        e('v_bfe_u32 v10, v1, 4, 1'); e('v_lshl_add_u32 v9, v10, 5, v9'); e('v_and_b32 v10, 3, v1'); e('v_lshl_add_u32 v9, v10, 3, v9'); e('v_add_u32 v9, s12, v9')
    if i == 42:
        for q in range(4): e(f'ds_read_b64_tr_b16 v[{16+2*q}:{17+2*q}], v9 offset:{512*q}')
    if i == 43:
        e('v_and_b32 v11, 31, v1'); e('v_lshlrev_b32 v10, 10, v11'); e('v_lshrrev_b32 v12, 5, v1'); e('v_lshl_add_u32 v10, v12, 4, v10')
        e('s_lshl_b32 s4, s8, 15'); e(f's_lshl_b32 s5, s{CT}, 7'); e('s_add_u32 s4, s4, s5'); e(f's_and_b32 s5, s{WV}, 1'); e('s_lshl_b32 s5, s5, 6'); e('s_add_u32 s39, s4, s5')
    if i == 44:
        e(f's_lshr_b32 s4, s{WV}, 1'); e('s_lshl_b32 s4, s4, 7'); e(f's_add_u32 s4, s4, {PVS}')
        e('v_and_b32 v11, 15, v1'); e('v_lshl_add_u32 v11, v11, 2, s4'); e('v_bfe_u32 v13, v1, 4, 1'); e('v_lshl_add_u32 v11, v13, 9, v11')
    if i == 45:
        e(f's_lshl_b32 s4, s{WV}, 12'); e('v_add_u32 v12, s4, v5')
    if i == 46:
        e('s_waitcnt lgkmcnt(0)')
    if 46 <= i < 50:
        q = i - 46
        unpack(RU+4*q, RU+1+4*q, 16+2*q); unpack(RU+2+4*q, RU+3+4*q, 17+2*q)
stamp('g2_done')
for q in range(8): e(f'ds_write_b128 v8, v[{224+4*q}:{227+4*q}] offset:{8192 + 1024*q}')
e('s_waitcnt lgkmcnt(0)')
e('s_barrier')
e('ds_read2_b32 v[14:15], v11 offset0:0 offset1:16'); e('ds_read2_b32 v[16:17], v11 offset0:64 offset1:80')
for q in range(4):
    for w in range(4):
        e(f'ds_read_b128 v[{32+16*q+4*w}:{35+16*q+4*w}], v12 offset:{16384*w + 1024*q}')
    if q == 1:
        e('s_waitcnt lgkmcnt(8)')
        e('v_add_f32 v14, v14, v15'); e('v_add_f32 v16, v16, v17'); e('v_add_f32 v14, v14, v16')
        e('v_mul_f32 v14, 0x3b000000, v14'); e('v_max_f32 v14, 0, v14')
rstd_from_var(14)
for q in range(4):
    e(f's_waitcnt lgkmcnt({4*(3-q)})')
    b = 32 + 16*q
    for hh in range(2):
        e(f'v_pk_add_f32 {p2(b+2*hh)}, {p2(b+2*hh)}, {p2(b+4+2*hh)}'); e(f'v_pk_add_f32 {p2(b+8+2*hh)}, {p2(b+8+2*hh)}, {p2(b+12+2*hh)}')
    for hh in range(2): e(f'v_pk_add_f32 {p2(b+2*hh)}, {p2(b+2*hh)}, {p2(b+8+2*hh)}')
    for hh in range(2): e(f'v_pk_fma_f32 {p2(b+2*hh)}, {p2(b+2*hh)}, v[14:15], {p2(RU+4*q+2*hh)} op_sel_hi:[1,0,1]')
    for hh in range(2): e(f'v_cvt_pk_bf16_f32 v{112+2*q+hh}, v{b+2*hh}, v{b+2*hh+1}')
    if q & 1:
        o = 112 + 2*(q-1)
        e(f'v_permlane32_swap_b32 v{o}, v{o+2}'); e(f'v_permlane32_swap_b32 v{o+1}, v{o+3}')
        e(f'buffer_store_dwordx4 v[{o}:{o+3}], v10, {srd(sOUT)}, s39 offen offset:{32*(q//2)}')

OOL = ool
if STAMPS:
    stamp('end')
    e('s_waitcnt vmcnt(0)')
    e('s_memrealtime s[72:73]')
    e(f's_cmp_lg_u32 s{WV}, 0'); e('s_cbranch_scc1 L_END')
    e('s_waitcnt lgkmcnt(0)')
    e('s_lshl_b32 s4, s2, 7'); e(f's_add_u32 s4, s4, {L.STAMP}')
    e('v_mov_b32 v2, 0')
    e('s_mov_b64 exec, 1')
    for i in range(16):
        e(f'v_mov_b32 v4, s{70+2*i}'); e(f'v_mov_b32 v5, s{71+2*i}')
        e(f'buffer_store_dwordx2 v[4:5], v2, {srd(sWS)}, s4 offen offset:{8*i}')
        e('s_nop 1')
e('L_END:')
e('s_endpgm')
for i, b in OOL:
    e(f'L_S2_{i}:')
    for s in range(2):
        e(f'v_mfma_f32_16x16x32_bf16 v[{S2+4*s}:{S2+4*s+3}], v[{b+4*s}:{b+4*s+3}], v[{b+4*s}:{b+4*s+3}], {"0" if i % 2 == 0 else f"v[{S2+4*s}:{S2+4*s+3}]"}')
    e(f's_branch L_S2R_{i}')

hdr = f'''; generated by gen9.py (own generator script)
; @launch grid=(256,1,1) block=(256,1,1) lds=163840
.amdgcn_target "amdgcn-amd-amdhsa--gfx950"
.text
.globl {NAME}_kernel
.p2align 8
.type {NAME}_kernel,@function
'''
ftr = f'''.fill 8192, 4, 0xBF800000
.section .rodata,"a"
.p2align 6
.amdhsa_kernel {NAME}_kernel
  .amdhsa_next_free_vgpr 512
  .amdhsa_next_free_sgpr 102
  .amdhsa_accum_offset 256
  .amdhsa_group_segment_fixed_size 0
  .amdhsa_kernarg_size 96
  .amdhsa_user_sgpr_count 2
  .amdhsa_user_sgpr_kernarg_segment_ptr 1
  .amdhsa_system_sgpr_workgroup_id_x 1
  .amdhsa_float_denorm_mode_32 3
.end_amdhsa_kernel
'''
open(OUT, 'w').write(hdr + A.text() + ftr)
if STAMPS: open('stamps.txt', 'w').write(' '.join(st_used))
print('stamps', st_used, 'instructions', sum(1 for i in A.ins if i.states))
```

```python
import sys
from asmlib import Asm
import layout as L
NAME = 'sequential_preLN__ssm_conv_h3__dense_activation_relu__prompt'
args = sys.argv[1:]
OUT = [a for a in args if not a.startswith('--')][0]
opt = {}
for a in args:
    if a.startswith('--'):
        k, _, v = a[2:].partition('='); opt[k] = v
def O(name, d): return int(opt.get(name, d))
STAMPS = 'stamps' in opt
ST_SEL = opt.get('stamps', '').replace(',', ' ').split()
NT = ' nt'
A = Asm(); e = A

WV = 3
sK, sV, sSH, sQ, sSK, sWS, sW1, sW2, sOUT, sHB = 28, 32, 36, 40, 44, 48, 52, 56, 60, 64
G, J = 68, 69
EPO, DPAIR, TAG, SPIN = 16, 17, 18, 19
RB, CS, RT, CT = 22, 23, 24, 25
sD, sUB, sKV0, sKV1, sXT0, sXT1, sSTA, sW2S, sW2L, sW1S, sW1L, sRING = 7, 6, 8, 9, 10, 11, 12, 13, 14, 15, 20, 21
sEX, sES, sEH = 28, 30, 32
def srd(r): return f's[{r}:{r+3}]'
st_used = []
def stamp(name):
    if STAMPS and name in ST_SEL:
        r = 76 + 2*len(st_used); assert r + 1 <= 101
        e(f's_memtime s[{r}:{r+1}]'); st_used.append(name)

RING = 114688; RINGW = 12288; NSLOT = 5
KPITCH = 4384; KCH = 8*KPITCH
KC0 = 84992; U0 = 155136; UPITCH = 4352
TB1 = U0; TB2 = 0
CNT = 81920
C1S = RING + NSLOT*2048
PVS = C1S
SPINMAX = 1 << 16
NA1 = O('na1', 12); NB1 = O('nb1', 8)
assert 2*(NA1 + NB1)*2048 <= CNT

vB, vA, vSHo, vL16, vS0, vS1, vXR, vT1w, vT2w, vTr, vT1r, vGS, vSTo = 2, 3, 4, 5, 6, 7, 8, 9, 10, 11, 12, 13, 14
vK, vU, vX, vST, vF1B, vKV0, vKV1, vHBo, vF1, vKCW, vW2D, vW2R = range(15, 27)
vTAG, vZ = 250, 251
W1O = 240
SH, K, V, X, XR, SKW, WP, KF, VF, ACC, PK, TR = 32, 40, 54, 62, 70, 80, 96, 112, 140, 156, 172, 180

def mk_srd(r, lo, nrec):
    e(f's_mov_b64 s[{r}:{r+1}], s[{lo}:{lo+1}]'); e(f's_mov_b32 s{r+2}, {nrec}'); e(f's_mov_b32 s{r+3}, 0x20000')
def poll_issue(reg, n, tmp):
    w = {1: 'dword', 2: 'dwordx2', 4: 'dwordx4'}[n]
    d = f'v{tmp}' if n == 1 else f'v[{tmp}:{tmp+n-1}]'
    e(f'buffer_load_{w} {d}, v{reg}, {srd(sWS)}, 0 offen sc1')
def poll(reg, n, tmp, issued=None):
    lab = e.label('POLL'); done = e.label('PDONE'); chk = e.label('PCHK')
    e(f's_mov_b32 s{SPIN}, 0')
    if issued is not None:
        e(f's_waitcnt vmcnt({issued})'); e(f's_branch {chk}')
    else:
        e('s_mov_b64 vcc, -1')
    e(f'{lab}:')
    e('s_mov_b64 exec, vcc')
    poll_issue(reg, n, tmp)
    e(f's_add_u32 s{SPIN}, s{SPIN}, 1')
    e('s_waitcnt vmcnt(0)')
    e(f'{chk}:')
    if n == 1:
        e(f'v_cmp_ne_u32 vcc, s{TAG}, v{tmp}')
    else:
        for i in range(n): e(f'v_xor_b32 v{tmp+i}, s{TAG}, v{tmp+i}')
        e(f'v_or3_b32 v{tmp}, v{tmp}, v{tmp+1}, v{tmp+2}'); e(f'v_or_b32 v{tmp}, v{tmp}, v{tmp+3}')
        e(f'v_cmp_ne_u32 vcc, 0, v{tmp}')
    e(f's_cbranch_vccz {done}')
    e(f's_cmp_lt_u32 s{SPIN}, {SPINMAX}')
    e(f's_cbranch_scc1 {lab}')
    e(f'{done}:')
    e('s_mov_b64 exec, -1')
def flag_store(soff):
    e('s_mov_b64 exec, 1')
    e(f'buffer_store_dword v{vTAG}, v{vZ}, {srd(sWS)}, s{soff} offen sc1')
    e('s_mov_b64 exec, -1')
def wg_flag(base, wave):
    lab = e.label('NF')
    e(f's_cmp_lg_u32 s{WV}, {wave}'); e(f's_cbranch_scc1 {lab}')
    e('s_lshl_b32 s4, s2, 7'); e(f's_add_u32 s4, s4, {base}')
    flag_store(4)
    e(f'{lab}:')
def bf16r(dst, src):
    e(f'v_cvt_pk_bf16_f32 v{dst}, v{src}, v{src}'); e(f'v_and_b32 v{dst}, 0xffff0000, v{dst}')
def unpack_l(dlo, dhi, src): return [f'v_lshlrev_b32 v{dlo}, 16, v{src}', f'v_and_b32 v{dhi}, 0xffff0000, v{src}']
def unpack(dlo, dhi, src):
    for x in unpack_l(dlo, dhi, src): e(x)
def p2(b): return f'v[{b}:{b+1}]'
def p4(b): return f'v[{b}:{b+3}]'
def rstd_l(regs):
    r = []
    def rnd():
        for v in regs: r.append(f'v_cvt_pk_bf16_f32 v{v}, v{v}, v{v}')
        for v in regs: r.append(f'v_and_b32 v{v}, 0xffff0000, v{v}')
    rnd()
    for v in regs: r.append(f'v_add_f32 v{v}, 0x3727c5ac, v{v}')
    rnd()
    for v in regs: r.append(f'v_sqrt_f32 v{v}, v{v}')
    rnd()
    for v in regs: r.append(f'v_rcp_f32 v{v}, v{v}')
    return r
def weave(mf, fill):
    for i, x in enumerate(mf):
        e(x)
        for y in fill.get(i, []): e(y)
def spread(n, items, start=0, per=2, fill=None):
    fill = fill if fill is not None else {}
    i = start
    for it in items:
        while len(fill.setdefault(i, [])) >= per: i += 1
        assert i < n, (i, n)
        fill[i].append(it)
    return fill
def w2_dma_l(n, base, k0=0):
    return [[f's_add_u32 m0, s{base}, {2048*k0 + 1024*k}', f'buffer_load_dwordx4 v{vW2D}, {srd(sW2)}, s{sW2S} offen lds', f's_add_u32 s{sW2S}, s{sW2S}, 8192'] for k in range(2*n)]
def w2_read_l(ks0, n, r0=27):
    return [f'ds_read_b64_tr_b16 a[{8*(ks0+k)+4*dt+2*x}:{8*(ks0+k)+4*dt+2*x+1}], v{r0+dt} offset:{2048*k + 512*x}' for k in range(n) for dt in range(2) for x in range(2)]
def w2_raddr(base, r0=27):
    e(f'v_add_u32 v{r0}, s{base}, v{vW2R}'); e(f'v_xor_b32 v{r0+1}, 64, v{r0}')
def emit(groups):
    for g in groups:
        if isinstance(g, str): e(g)
        else:
            for x in g: e(x)

e(f'{NAME}_kernel:')
e('s_cmp_ge_u32 s2, 256')
e('s_cbranch_scc1 L_END')
e('s_load_dwordx16 s[4:19], s[0:1], 0')
e('s_load_dwordx8 s[20:27], s[0:1], 64')
e('s_getpc_b64 s[30:31]')
e('v_lshlrev_b32 v240, 7, v0')
e('global_load_dword v255, v240, s[30:31]')
if STAMPS:
    e('s_memrealtime s[70:71]'); e('s_memtime s[74:75]')
e('v_and_b32 v1, 63, v0')
e('v_lshrrev_b32 v2, 6, v0')
e(f's_and_b32 s{G}, s2, 7')
e(f'v_readfirstlane_b32 s{WV}, v2')
e(f's_lshr_b32 s{J}, s2, 3')
e('v_and_b32 v4, 15, v0')
e('v_lshrrev_b32 v2, 4, v0')
e('v_lshlrev_b32 v2, 12, v2')
e('v_lshl_add_u32 v2, v4, 3, v2')
e(f's_lshl_b32 vcc_lo, s{J}, 16')
e(f's_lshl_b32 vcc_hi, s{G}, 7')
e('s_add_u32 vcc_lo, vcc_lo, vcc_hi')
e(f'v_add_u32 v{vB}, vcc_lo, v2')
e(f'v_add_u32 v{vA}, 0xfffff400, v{vB}')
e(f's_lshl_b32 vcc_lo, s{G}, 9')
e('v_lshlrev_b32 v4, 5, v4')
e(f'v_add_u32 v{vSHo}, vcc_lo, v4')
e(f'v_lshlrev_b32 v{vL16}, 4, v1')
for r in (sSH, sK, sV, sQ):
    e(f's_mov_b32 s{r+2}, {4096 if r == sSH else 2097152}'); e(f's_mov_b32 s{r+3}, 0x20000')
e(f'v_lshrrev_b32 v{vXR}, 5, v1'); e('v_and_b32 v27, 31, v1'); e(f'v_lshlrev_b32 v{vXR}, 10, v{vXR}'); e(f'v_lshl_add_u32 v{vXR}, v27, 4, v{vXR}')
e('s_waitcnt lgkmcnt(0)')
stamp('karg')
e(f's_mov_b64 s[{sK}:{sK+1}], s[6:7]')
for i in range(4): e(f'buffer_load_dwordx2 v[{K+6+2*i}:{K+7+2*i}], v{vB}, {srd(sK)}, 0 offen offset:{1024*i}{NT}')
e(f's_mov_b64 s[{sSH}:{sSH+1}], s[10:11]')
e(f'buffer_load_dwordx4 {p4(SH)}, v{vSHo}, {srd(sSH)}, 0 offen')
e(f'buffer_load_dwordx4 {p4(SH+4)}, v{vSHo}, {srd(sSH)}, 0 offen offset:16')
e(f's_mov_b64 s[{sV}:{sV+1}], s[8:9]')
for i in range(4): e(f'buffer_load_dwordx2 v[{V+2*i}:{V+1+2*i}], v{vB}, {srd(sV)}, 0 offen offset:{1024*i}{NT}')
for i in range(3): e(f'buffer_load_dwordx2 v[{K+2*i}:{K+1+2*i}], v{vA}, {srd(sK)}, 0 offen offset:{1024*i}{NT}')
e(f's_mov_b64 s[{sQ}:{sQ+1}], s[4:5]')
for i in range(4): e(f'buffer_load_dwordx2 v[{X+2*i}:{X+1+2*i}], v{vB}, {srd(sQ)}, 0 offen offset:{1024*i}{NT}')
e('s_lshl_b32 s4, s2, 13'); e(f's_lshl_b32 s5, s{WV}, 11'); e('s_add_u32 s4, s4, s5')
for i in range(2): e(f'buffer_load_dwordx4 {p4(XR+4*i)}, v{vXR}, {srd(sQ)}, s4 offen offset:{512*i}{NT}')
NA = 6
e(f's_lshl_b32 s4, s{G}, 6'); e(f's_lshl_b32 s5, s{J}, 1'); e('s_add_u32 s4, s4, s5')
e('s_lshl_b32 s6, s4, 1')
e(f's_load_dword s{DPAIR}, s[14:15], s6')
e(f's_load_dword s{EPO}, s[26:27], {L.EPOCH}')
e(f's_lshr_b32 s5, s{WV}, 1'); e('s_add_u32 s5, s4, s5'); e('s_lshl_b32 s5, s5, 12')
e(f's_add_u32 s{sSK}, s12, s5'); e(f's_addc_u32 s{sSK+1}, s13, 0'); e(f's_mov_b32 s{sSK+2}, 4096'); e(f's_mov_b32 s{sSK+3}, 0x20000')
e(f's_and_b32 vcc_lo, s{WV}, 1')
e(f's_add_u32 s{sD}, s4, vcc_lo')
mk_srd(sWS, 26, L.WS_USED); mk_srd(sOUT, 22, 2097152); mk_srd(sW1, 18, 512*1792*2); mk_srd(sW2, 20, 512*1792*2)
e(f's_mul_i32 s{sUB}, vcc_lo, {UPITCH}'); e(f's_add_u32 s{sUB}, s{sUB}, {U0}')
e('s_lshl_b32 vcc_hi, vcc_lo, 11')
e(f'v_add_u32 v{vS1}, vcc_hi, v{vL16}'); e(f'v_add_u32 v{vS0}, -16, v{vS1}')
e(f's_lshr_b32 s{RB}, s{G}, 1'); e(f's_lshl_b32 s{RB}, s{RB}, 2'); e(f's_and_b32 s5, s{J}, 3'); e(f's_add_u32 s{RB}, s{RB}, s5')
e(f's_and_b32 s{CS}, s{G}, 1'); e(f's_lshl_b32 s{CS}, s{CS}, 3'); e(f's_lshr_b32 s4, s{J}, 2'); e(f's_add_u32 s{CS}, s{CS}, s4')
e(f's_lshl_b32 s{RT}, s{G}, 2'); e(f's_add_u32 s{RT}, s{RT}, s5'); e(f's_lshr_b32 s{CT}, s2, 5')
e(f's_lshl_b32 s5, s{RB}, 2'); e(f's_add_u32 s5, s5, s{WV}'); e('s_lshl_b32 s5, s5, 15'); e(f's_add_u32 s5, s5, {L.HB}')
e(f's_add_u32 s{sHB}, s26, s5'); e(f's_addc_u32 s{sHB+1}, s27, 0'); e(f's_mov_b32 s{sHB+2}, 32768'); e(f's_mov_b32 s{sHB+3}, 0x20000')
e('v_and_b32 v27, 15, v0'); e('v_lshrrev_b32 v28, 4, v0'); e('v_and_b32 v29, 7, v0'); e('v_lshlrev_b32 v30, 1, v29')
e('v_xor_b32 v28, v28, v30'); e('v_lshlrev_b32 v27, 9, v27')
e(f'v_lshl_add_u32 v{vT2w}, v28, 3, v27')
e('v_xor_b32 v28, 15, v28'); e(f'v_lshl_add_u32 v{vT1w}, v28, 3, v27'); e(f'v_add_u32 v{vT1w}, {TB1}, v{vT1w}')
e('v_lshrrev_b32 v28, 5, v0'); e('v_xor_b32 v28, v28, v29'); e('v_lshrrev_b32 v30, 3, v0')
e(f'v_lshlrev_b32 v{vTr}, 7, v30'); e(f'v_lshl_add_u32 v{vTr}, v28, 4, v{vTr}'); e(f'v_add_u32 v{vT1r}, {TB1}, v{vTr}')
e(f'v_lshlrev_b32 v{vGS}, 12, v30'); e(f'v_lshl_add_u32 v{vGS}, v29, 4, v{vGS}')
e(f's_lshl_b32 s4, s{G}, 18'); e(f's_lshl_b32 s5, s{J}, 7')
e(f's_add_u32 s{sXT0}, s4, {L.XT}'); e(f's_add_u32 s{sXT0}, s{sXT0}, s5'); e(f's_add_u32 s{sXT1}, s{sXT0}, 131072')
e(f's_add_u32 s{sKV0}, s4, {L.KVR + 4096 - 128}'); e(f's_sub_u32 s{sKV0}, s{sKV0}, s5'); e(f's_add_u32 s{sKV1}, s{sKV0}, 131072')
e(f'v_mov_b32 v{vZ}, 0')
e(f'v_and_b32 v{vSTo}, 1, v1'); e(f'v_lshlrev_b32 v{vSTo}, 4, v{vSTo}'); e('v_lshrrev_b32 v27, 5, v1'); e(f'v_lshl_add_u32 v{vSTo}, v27, 2, v{vSTo}')
e(f's_lshl_b32 s{sSTA}, s2, 6'); e(f's_lshr_b32 s5, s{WV}, 1'); e('s_lshl_b32 s5, s5, 5'); e(f's_add_u32 s{sSTA}, s{sSTA}, s5')
e('s_lshl_b32 s5, vcc_lo, 3'); e(f's_add_u32 s{sSTA}, s{sSTA}, s5'); e(f's_add_u32 s{sSTA}, s{sSTA}, {L.STATS}')
e('v_and_b32 v27, 15, v1'); e('v_lshrrev_b32 v28, 4, v1')
e(f'v_and_b32 v{vK}, 7, v1'); e(f's_movk_i32 s4, {KPITCH}'); e(f'v_mul_u32_u24 v{vK}, s4, v{vK}')
e('v_bfe_u32 v29, v1, 3, 1'); e(f'v_lshl_add_u32 v{vK}, v29, 8, v{vK}')
e('v_lshlrev_b32 v29, 4, v28'); e(f'v_sub_u32 v{vK}, v{vK}, v29')
e(f's_mul_i32 s5, vcc_lo, {KCH}'); e(f's_add_u32 s5, s5, {KC0 + 48}'); e(f'v_add_u32 v{vK}, s5, v{vK}')
e(f's_lshr_b32 s4, s{WV}, 1'); e(f's_mul_i32 s5, s4, {KCH}'); e(f's_add_u32 s5, s5, {KC0}'); e(f'v_add_u32 v{vKCW}, s5, v{vS1}')
e('v_add_u32 v29, v27, v28'); e('v_lshlrev_b32 v29, 4, v29'); e(f's_add_u32 s5, s{sUB}, 288'); e(f'v_sub_u32 v{vU}, s5, v29')
e('v_lshrrev_b32 v29, 5, v1'); e('v_lshlrev_b32 v29, 7, v29'); e('v_lshl_add_u32 v29, v27, 3, v29')
e('v_bfe_u32 v30, v1, 4, 1'); e('v_lshl_add_u32 v29, v30, 2, v29')
e(f'v_lshlrev_b32 v{vX}, 1, v29'); e(f'v_lshlrev_b32 v{vST}, 3, v29')
e(f'v_lshlrev_b32 v{vF1B}, 7, v1'); e(f'v_add_u32 v{vF1B}, {L.F1B}, v{vF1B}')
e(f's_cmp_lt_u32 s{WV}, 2'); e('s_cselect_b32 s26, 2, 0'); e('s_cselect_b32 s27, 4, 6')
e(f's_add_u32 s5, s{sUB}, 4088 - 512'); e(f'v_sub_u32 v29, s5, v{vX}')
e('s_lshl_b32 s4, s26, 9'); e(f'v_subrev_u32 v{vKV0}, s4, v29'); e('s_lshl_b32 s4, s27, 9'); e(f'v_subrev_u32 v{vKV1}, s4, v29')
e(f'v_lshlrev_b32 v{vHBo}, 3, v30'); e('v_lshrrev_b32 v29, 5, v1'); e(f'v_lshl_add_u32 v{vHBo}, v29, 2, v{vHBo}')
e('v_bfe_u32 v29, v1, 2, 2'); e(f'v_add_u32 v{vHBo}, v{vHBo}, v29'); e(f'v_lshlrev_b32 v{vHBo}, 15, v{vHBo}')
e('v_and_b32 v29, 3, v1'); e(f'v_lshl_add_u32 v{vHBo}, v29, 4, v{vHBo}')
e(f'v_and_b32 v{vF1}, 31, v1'); e(f'v_lshlrev_b32 v{vF1}, 10, v{vF1}')
e(f's_lshl_b32 s4, s{G}, 7'); e(f's_add_u32 s4, s4, {L.F1}'); e(f'v_add_u32 v{vF1}, s4, v{vF1}')
e(f'v_lshrrev_b32 v{vW2D}, 3, v1'); e(f'v_lshlrev_b32 v{vW2D}, 10, v{vW2D}')
e('v_lshlrev_b32 v29, 2, v30'); e('v_and_b32 v31, 7, v1'); e('v_xor_b32 v29, v29, v31'); e(f'v_lshl_add_u32 v{vW2D}, v29, 4, v{vW2D}')
e('v_lshrrev_b32 v29, 5, v1'); e('v_lshlrev_b32 v29, 3, v29'); e('v_bfe_u32 v31, v1, 2, 2'); e('v_add_u32 v29, v29, v31'); e('v_lshlrev_b32 v29, 7, v29')
e('v_lshl_add_u32 v29, v30, 5, v29'); e('v_and_b32 v31, 3, v1'); e('v_lshl_add_u32 v29, v31, 3, v29')
e('v_bfe_u32 v31, v1, 3, 1'); e(f'v_lshl_add_u32 v{vW2R}, v31, 6, v29')
e(f's_mul_i32 s{sW2S}, s{WV}, {448*1024}'); e(f's_lshl_b32 s4, s{CT}, 7'); e(f's_add_u32 s{sW2S}, s{sW2S}, s4')
e(f's_mul_i32 s4, vcc_lo, {NA1*2048}'); e(f's_mul_i32 s5, vcc_lo, {NB1*2048}'); e(f's_add_u32 s5, s5, {2*NA1*2048}')
e(f's_cmp_lt_u32 s{WV}, 2'); e(f's_cselect_b32 s{sW2L}, s5, s4')
e('s_movk_i32 s4, 4682'); e('s_movk_i32 s5, 3360')
for i in range(7):
    e(f'v_add_u32 v{W1O+i}, {64*i}, v1')
    e(f'v_mul_u32_u24 v31, s4, v{W1O+i}'); e('v_lshrrev_b32 v31, 16, v31')
    e(f'v_lshlrev_b32 v{W1O+i}, 4, v{W1O+i}'); e(f'v_mad_u32_u24 v{W1O+i}, v31, s5, v{W1O+i}')
e(f's_mul_i32 s{sW1S}, s{WV}, {32*3584}'); e(f's_mul_i32 s4, s{CS}, 224'); e(f's_add_u32 s{sW1S}, s{sW1S}, s4')
e(f's_mul_i32 s{sW1L}, s{WV}, 7168')
e(f's_mul_i32 s{sRING}, s{WV}, {RINGW}'); e(f's_add_u32 s{sRING}, s{sRING}, {RING}')
for n in range(4): e(f'v_mov_b32 v{TR+n}, 0')
e('v_lshrrev_b32 v29, 4, v0'); e(f's_movk_i32 s4, {KPITCH}'); e('v_and_b32 v31, 15, v0'); e('v_lshlrev_b32 v31, 4, v31')
e('v_mad_u32_u24 v29, v29, s4, v31'); e(f'v_add_u32 v29, {KC0}, v29')
e(f'ds_write_b128 v29, {p4(TR)}')
e(f'v_add_u32 v247, {U0 + 4096}, v31')
e(f'v_mov_b32 v248, {CNT}')
e(f'ds_write_b32 v248, v{vZ}')
def tap(t, o):
    for cp in range(2):
        acc = ACC + 4*o + 2*cp; kf = KF + 4*(o + 3 - t) + 2*cp; w = WP + 4*t + 2*cp
        if t == 0: e(f'v_pk_mul_f32 {p2(acc)}, {p2(kf)}, {p2(w)}')
        else: e(f'v_pk_fma_f32 {p2(acc)}, {p2(kf)}, {p2(w)}, {p2(acc)}')
e(f's_waitcnt vmcnt({NA + 9})')
for i in range(3, 7):
    for cp in range(2): unpack(KF + 4*i + 2*cp, KF + 4*i + 2*cp + 1, K + 2*i + cp)
e(f's_waitcnt vmcnt({NA + 7})')
for cp in range(2):
    for hf in range(2):
        d0 = SH + 4*cp + 2*hf
        unpack(WP + 0 + 2*cp + hf, WP + 4 + 2*cp + hf, d0)
        unpack(WP + 8 + 2*cp + hf, WP + 12 + 2*cp + hf, d0 + 1)
for t in range(4):
    for o in range(t, 4): tap(t, o)
e(f's_waitcnt vmcnt({NA + 3})')
for o in range(4):
    for cp in range(2): unpack(VF + 4*o + 2*cp, VF + 4*o + 2*cp + 1, V + 2*o + cp)
e(f's_waitcnt vmcnt({NA})')
stamp('kv_arrived')
for i in range(3):
    for cp in range(2): unpack(KF + 4*i + 2*cp, KF + 4*i + 2*cp + 1, K + 2*i + cp)
for t in range(1, 4):
    for o in range(0, t): tap(t, o)
for o in (3, 2, 1, 0):
    for cp in range(2): e(f'v_pk_mul_f32 {p2(ACC+4*o+2*cp)}, {p2(ACC+4*o+2*cp)}, {p2(VF+4*o+2*cp)}')
for i in range(4):
    e(f'v_cvt_pk_bf16_f32 v{PK+2*i}, v{ACC+12+i}, v{ACC+8+i}')
    e(f'v_cvt_pk_bf16_f32 v{PK+2*i+1}, v{ACC+4+i}, v{ACC+i}')
    e(f'ds_write_b64 v{vT1w}, {p2(PK+2*i)} offset:{128*i}')
e('s_waitcnt lgkmcnt(0)')
e('s_barrier')
e(f'ds_read_b128 {p4(TR)}, v{vT1r}')
e(f'ds_read_b128 {p4(TR+4)}, v{vT1r} offset:4096')
e(f's_mul_i32 s{TAG}, s{EPO}, 1664525'); e(f's_add_u32 s{TAG}, s{TAG}, 1013904223')
e('s_mov_b32 s4, 0x05040100'); e('s_mov_b32 s5, 0x07060302')
e(f'v_mov_b32 v{vTAG}, s{TAG}')
e('s_waitcnt lgkmcnt(1)')
e(f'buffer_store_dwordx4 {p4(TR)}, v{vGS}, {srd(sWS)}, s{sKV0} offen sc1')
e('s_waitcnt lgkmcnt(0)')
e(f'buffer_store_dwordx4 {p4(TR+4)}, v{vGS}, {srd(sWS)}, s{sKV1} offen sc1')
stamp('kv_stored')
e('s_waitcnt vmcnt(4)')
for cp in range(2):
    for hf in range(2):
        i = 2*cp + hf
        e(f'v_perm_b32 v{PK+2*i}, v{X+2+cp}, v{X+cp}, s{4+hf}')
        e(f'v_perm_b32 v{PK+2*i+1}, v{X+6+cp}, v{X+4+cp}, s{4+hf}')
        e(f'ds_write_b64 v{vT2w}, {p2(PK+2*i)} offset:{TB2+128*i}')
e('s_waitcnt lgkmcnt(0)')
e('s_barrier')
e(f'ds_read_b128 {p4(TR+8)}, v{vTr} offset:{TB2}')
e(f'ds_read_b128 {p4(TR+12)}, v{vTr} offset:{TB2+4096}')
e('s_waitcnt vmcnt(2)')
F = KF; S = KF + 16
for i in range(4): unpack(F + 2*i, F + 2*i + 1, XR + i)
e('s_waitcnt lgkmcnt(1)')
e(f'buffer_store_dwordx4 {p4(TR+8)}, v{vGS}, {srd(sWS)}, s{sXT0} offen sc1')
for i in range(4, 8): unpack(F + 2*i, F + 2*i + 1, XR + i)
e('s_waitcnt lgkmcnt(0)')
e(f'buffer_store_dwordx4 {p4(TR+12)}, v{vGS}, {srd(sWS)}, s{sXT1} offen sc1')
e(f'v_pk_add_f32 {p2(S)}, {p2(F)}, {p2(F+2)}'); e(f'v_pk_mul_f32 {p2(S+2)}, {p2(F)}, {p2(F)}')
e(f'v_pk_fma_f32 {p2(S+2)}, {p2(F+2)}, {p2(F+2)}, {p2(S+2)}')
for i in range(2, 8):
    e(f'v_pk_add_f32 {p2(S)}, {p2(S)}, {p2(F+2*i)}'); e(f'v_pk_fma_f32 {p2(S+2)}, {p2(F+2*i)}, {p2(F+2*i)}, {p2(S+2)}')
e(f'v_add_f32 v{S}, v{S}, v{S+1}'); e(f'v_add_f32 v{S+1}, v{S+2}, v{S+3}')
for mode in ('quad_perm:[1,0,3,2]', 'quad_perm:[2,3,0,1]', 'row_half_mirror', 'row_mirror'):
    for r in (S, S+1): e(f'v_add_f32_dpp v{r}, v{r}, v{r} {mode} row_mask:0xf bank_mask:0xf')
e(f'v_mov_b32 v{S+2}, v{S}'); e(f'v_mov_b32 v{S+3}, v{S+1}')
e(f'v_permlane16_swap_b32 v{S}, v{S+2}'); e(f'v_permlane16_swap_b32 v{S+1}, v{S+3}')
e(f'v_pk_add_f32 {p2(S)}, {p2(S)}, {p2(S+2)}')
e(f'v_mul_f32 v{S}, 0x3b000000, v{S}'); e(f'v_mul_f32 v{S+1}, 0x3b000000, v{S+1}')
e(f'v_fma_f32 v{S+1}, -v{S}, v{S}, v{S+1}'); e(f'v_max_f32 v{S+1}, 0, v{S+1}')
bf16r(S, S)
emit(rstd_l([S+1]))
e('s_mov_b32 vcc_lo, 0xaaaaaaaa'); e('s_mov_b32 vcc_hi, 0xaaaaaaaa')
e(f'v_mul_f32 v{S}, v{S}, -v{S+1}')
e(f'v_cndmask_b32 v{S}, v{S+1}, v{S}, vcc')
e('s_mov_b32 exec_lo, 3'); e('s_mov_b32 exec_hi, 3')
e(f'buffer_store_dword v{S}, v{vSTo}, {srd(sWS)}, s{sSTA} offen sc1')
e('s_mov_b64 exec, -1')
e(f'buffer_load_dwordx4 {p4(SKW)}, v{vS0}, {srd(sSK)}, 0 offen{NT}')
e(f'buffer_load_dwordx4 {p4(SKW+4)}, v{vS1}, {srd(sSK)}, 0 offen{NT}')
e(f'buffer_load_dwordx4 {p4(SKW+8)}, v{vS1}, {srd(sSK)}, 0 offen offset:1008{NT}')
e(f'buffer_load_dwordx4 {p4(SKW+12)}, v{vS1}, {srd(sSK)}, 0 offen offset:1024{NT}')
e(f's_lshl_b32 s{sXT0}, s{sD}, 12'); e(f's_add_u32 s{sXT0}, s{sXT0}, {L.XT}')
e(f's_lshl_b32 s{sXT1}, s{sD}, 6'); e(f's_add_u32 s{sXT1}, s{sXT1}, {L.HB}')
for pi in range(2):
    e(f's_lshl_b32 s4, s{26+pi}, 9'); e(f's_add_u32 s{sEX+pi}, s4, s{sXT0}')
    e(f's_lshl_b32 s4, s{26+pi}, 11'); e(f's_add_u32 s{sES+pi}, s4, {L.STATS}')
    e(f's_lshl_b32 s4, s{26+pi}, 18'); e(f's_add_u32 s{sEH+pi}, s4, s{sXT1}')
e(f's_lshl_b32 s34, s{sD}, 12'); e(f's_add_u32 s34, s34, {L.KVR}')
e('s_and_b32 s35, s2, 63'); e('s_lshl_b32 s35, s35, 7'); e('s_lshr_b32 s4, s2, 6'); e('s_lshl_b32 s4, s4, 2'); e('s_add_u32 s35, s35, s4'); e(f's_add_u32 s35, s35, {L.F1B}')
for n in range(4): e(f'v_mov_b32 v{PK+n}, 0')
e('v_mov_b32 v249, 1')
e('s_waitcnt vmcnt(7)')
e('s_barrier')
wg_flag(L.F1, 0)
stamp('flag1')
e('s_mov_b64 exec, 0xffff')
e(f'ds_write_b128 v247, {p4(PK)}'); e(f'ds_write_b128 v247, {p4(PK)} offset:{UPITCH}')
e('s_mov_b64 exec, -1')
def arrive():
    lab = e.label('NL')
    e('s_mov_b64 exec, 1')
    e('ds_add_rtn_u32 v249, v248, v249')
    e('s_waitcnt lgkmcnt(0)')
    e('v_cmp_ne_u32 vcc, 3, v249')
    e(f's_cbranch_vccnz {lab}')
    e(f'buffer_store_dword v{vTAG}, v{vZ}, {srd(sWS)}, s35 offen sc1')
    e(f'{lab}:')
    e('s_mov_b64 exec, -1')
def kcopies():
    for i in range(2):
        W = SKW + 8*i; Oa = 112 + 24*i; O2 = 120 + 24*i; M = 128 + 24*i
        for sh in (4, 8): e(f'ds_write_b128 v{vKCW}, {p4(W+sh//2)} offset:{(sh-1)*KPITCH + 256 + 1024*i}')
        for n in range(6): e(f'v_alignbit_b32 v{Oa+n}, v{W+n+1}, v{W+n}, 16')
        for n in range(6): e(f'v_alignbit_b32 v{O2+n}, v{W+n+2}, v{W+n+1}, 16')
        for n in range(6): e(f'v_mov_b32 v{M+n}, v{W+n+1}')
        src = {1: Oa, 2: M, 3: O2, 5: Oa+2, 6: M+2, 7: O2+2}
        for sh in (1, 5, 3, 7, 2, 6): e(f'ds_write_b128 v{vKCW}, {p4(src[sh])} offset:{(sh-1)*KPITCH + 256 + 1024*i}')
CACC, EX, EKV, FB, EST = 32, 48, 56, 64, 192
PCHK = O('pchk', 2)
def epi_loads():
    r = []
    for ti in range(4):
        pi, tt = divmod(ti, 2)
        r.append(f'buffer_load_dwordx2 {p2(EX+2*ti)}, v{vX}, {srd(sWS)}, s{sEX+pi} offen offset:{512*tt} sc1')
        r.append(f'buffer_load_dwordx4 {p4(EST+8*ti)}, v{vST}, {srd(sWS)}, s{sES+pi} offen offset:{2048*tt} sc1')
        r.append(f'buffer_load_dwordx4 {p4(EST+8*ti+4)}, v{vST}, {srd(sWS)}, s{sES+pi} offen offset:{2048*tt+16} sc1')
    return r
def conv_role(tiles, nf, extra, pre, chk_wait):
    pairs = [(a, b - a, ti) for ti, b in enumerate(tiles) for a in range(b + 1)]
    pairs.sort(key=lambda p: (max(p[0], p[1]), p[0]))
    def reads(phi):
        st = phi & 1; r = []
        for i in range(nf):
            r.append(f'ds_read_b128 {p4(FB+64*st+4*i)}, v{vK} offset:{512*i + 64*phi}')
            r.append(f'ds_read_b128 {p4(FB+64*st+32+4*i)}, v{vU} offset:{512*(7-i) + 64*phi}')
        return r
    for r in reads(0): e(r)
    poll_issue(vF1B, 4, 224)
    first = set()
    for phi in range(8):
        st = phi & 1; mf = []
        for (a, c, ti) in pairs:
            ka = FB + 64*st + 4*a; uc = FB + 64*st + 32 + 4*c; ac = CACC + 4*ti
            cc = p4(ac) if ti in first else '0'
            first.add(ti)
            mf.append(f'v_mfma_f32_16x16x32_bf16 {p4(ac)}, {p4(ka)}, {p4(uc)}, {cc}')
        if phi < 7: fill = spread(18, reads(phi + 1), start=4 if phi == 0 else 0, per=2)
        else: fill = spread(18, [f'ds_read_b64 {p2(EKV+2*ti)}, v{vKV0+ti//2} offset:{512*(1-ti%2)}' for ti in range(4)], per=1)
        ex = list(extra.get(phi, []))
        if phi == PCHK + 1: ex = [[x] for x in epi_loads()] + ex
        lo = (nf if phi else nf + 4) if phi < 7 else 2
        if len(ex) > 18 - lo: lo = max(0, 18 - len(ex)//2 - 1)
        for k, g in enumerate(ex):
            fill.setdefault(lo + (k*(18 - lo))//len(ex), []).extend(g if isinstance(g, list) else [g])
        for x in pre.get(phi, []): e(x)
        if phi == 0:
            done = -1; nnew = 0
            for i, x in enumerate(mf):
                mx = max(pairs[i][0], pairs[i][1])
                if mx > done:
                    done = mx; e(f's_waitcnt lgkmcnt({min(15, 2*(nf-1-mx) + nnew)})')
                e(x)
                for y in fill.get(i, []):
                    e(y); nnew += y.startswith('ds_')
        else:
            e('s_waitcnt lgkmcnt(0)')
            weave(mf, fill)
        if phi == PCHK: poll(vF1B, 4, 224, issued=chk_wait)
def split(lst, n):
    return [lst[(len(lst)*i)//n:(len(lst)*(i+1))//n] for i in range(n)]
def epilogue(npost):
    T0 = 64; HP = 128
    e(f's_and_b32 s4, s{WV}, 1'); e('s_lshl_b32 s4, s4, 4'); e(f's_lshr_b32 s4, s{DPAIR}, s4'); e('s_lshl_b32 s4, s4, 16'); e('s_mov_b32 s5, s4')
    e(f's_waitcnt vmcnt({npost})')
    for ti in range(4):
        t = T0 + 16*ti
        unpack(t, t+1, EX+2*ti); unpack(t+2, t+3, EX+2*ti+1)
        for hh in range(2): e(f'v_pk_fma_f32 {p2(t+4+2*hh)}, {p2(t+2*hh)}, {p2(EST+8*ti+2*hh)}, {p2(EST+8*ti+4+2*hh)}')
    e('s_waitcnt lgkmcnt(0)')
    for ti in range(4):
        ac = CACC + 4*ti; t = T0 + 16*ti
        unpack(t+9, t+8, EKV+2*ti+1); unpack(t+11, t+10, EKV+2*ti)
        for hh in range(2): e(f'v_pk_fma_f32 {p2(ac+2*hh)}, {p2(t+8+2*hh)}, s[4:5], {p2(ac+2*hh)}')
        for hh in range(2): e(f'v_pk_fma_f32 {p2(t+4+2*hh)}, {p2(t+4+2*hh)}, {p2(ac+2*hh)}, {p2(t+2*hh)}')
        for hh in range(2): e(f'v_cvt_pk_bf16_f32 v{HP+2*ti+hh}, v{t+4+2*hh}, v{t+5+2*hh}')
        if ti & 1:
            b = HP + 2*(ti - 1)
            e(f'v_permlane16_swap_b32 v{b}, v{b+2}'); e(f'v_permlane16_swap_b32 v{b+1}, v{b+3}')
            e(f'buffer_store_dwordx4 {p4(b)}, v{vHBo}, {srd(sWS)}, s{sEH+ti//2} offen sc1')
w2_raddr(sW2L)
e(f's_cmp_ge_u32 s{WV}, 2'); e('s_cbranch_scc1 L_ROLEA')
e('s_waitcnt vmcnt(4)')
arrive()
poll(vF1, 1, 29)
stamp('go1')
e(f's_mov_b32 m0, s{sUB}')
for i in range(4): e(f'buffer_load_dwordx4 v{vL16}, {srd(sWS)}, s34 offen offset:{1024*i} sc1 lds')
kcopies()
e('s_waitcnt vmcnt(0) lgkmcnt(0)')
e('s_barrier')
stamp('u_landed')
NB2 = O('nb2', NB1)
d1 = split(w2_dma_l(NB1, sW2L), PCHK + 1); r1 = split(w2_read_l(0, NB1), 2); d2 = split(w2_dma_l(NB2, sW2L), 2)
extra = {p: d1[p] for p in range(PCHK + 1)}
extra[4] = r1[0]; extra[5] = r1[1]; extra[6] = d2[0]; extra[7] = d2[1]
conv_role([2, 3, 4, 5], 6, extra, {4: ['s_waitcnt vmcnt(12)']}, 2*NB1)
stamp('conv_done')
epilogue(2*NB2)
stamp('h_stored')
e('s_waitcnt vmcnt(2)')
emit(w2_read_l(NB1, NB2))
e('s_branch L_CONVDONE')
e('L_ROLEA:')
NE = O('ne', 8)
da = w2_dma_l(NA1, sW2L)
GT = O('gt', 3)
NG = 0
if GT:
    e(f's_mul_i32 s4, s2, {56*128}'); e(f's_and_b32 s5, s{WV}, 1'); e(f's_mul_i32 s5, s5, {28*128}'); e('s_add_u32 s4, s4, s5')
    e('v_lshlrev_b32 v29, 7, v1')
    e('s_mov_b64 exec, 0xfffffff')
    if GT & 2: e(f'buffer_load_dword v254, v29, {srd(sW2)}, s4 offen'); NG += 1
    if GT & 1: e(f'buffer_load_dword v253, v29, {srd(sW1)}, s4 offen'); NG += 1
    e('s_mov_b64 exec, -1')
emit(da[:NE])
e(f's_waitcnt vmcnt({4 + NE + NG})')
arrive()
e(f's_waitcnt vmcnt({NE + NG})')
kcopies()
emit(da[NE:])
e('s_waitcnt lgkmcnt(0)')
e('s_barrier')
NA2 = O('na2', NA1)
r1 = split(w2_read_l(0, NA1), 2); d2 = split(w2_dma_l(NA2, sW2L), 3)
PA = O('pa', 2)
conv_role([0, 1, 6, 7], 8, {PA: r1[0], PA + 2 if PA + 1 == PCHK + 1 else PA + 1: r1[1], 5: d2[0], 6: d2[1], 7: d2[2]}, {PA: ['s_waitcnt vmcnt(1)']}, 0)
epilogue(2*NA2)
e('s_waitcnt vmcnt(2)')
emit(w2_read_l(NA1, NA2))
e('L_CONVDONE:')
ACC1, S1, S2, ONES, FR, C1 = 64, 120, 128, 136, 140, 212
vWa, vWb, vH0, vH1, vHD = 8, 9, 10, 11, 12
e('v_lshrrev_b32 v13, 2, v1'); e('v_and_b32 v15, 3, v1')
e('s_movk_i32 s4, 224'); e(f'v_mul_u32_u24 v{vWa}, s4, v13'); e(f'v_lshl_add_u32 v{vWa}, v15, 3, v{vWa}'); e(f'v_add_u32 v{vWb}, {8*7168}, v{vWa}')
e(f'v_lshlrev_b32 v{vH0}, 6, v13'); e(f'v_lshl_add_u32 v{vH0}, v15, 3, v{vH0}'); e('v_bfe_u32 v15, v1, 4, 1'); e('v_lshlrev_b32 v15, 5, v15'); e(f'v_xor_b32 v{vH0}, v{vH0}, v15')
e(f'v_add_u32 v{vH0}, s{sRING}, v{vH0}'); e(f'v_xor_b32 v{vH1}, 32, v{vH0}')
e(f'v_xor_b32 v{vHD}, v{vL16}, v15')
for r in range(4): e(f'v_mov_b32 v{ONES+r}, 0x3f803f80')
e(f'v_add_u32 v13, s{sW1L}, v{vWa}'); e(f'v_add_u32 v14, s{sW1L}, v{vWb}')
e('v_lshlrev_b32 v16, 7, v0'); e(f'v_add_u32 v16, {L.F2}, v16')
e('v_and_b32 v17, 48, v1'); e(f'v_add_u32 v17, {C1S}, v17'); e(f's_mul_i32 s4, s{WV}, 448'); e('v_add_u32 v18, s4, v17')
e('s_waitcnt vmcnt(0) lgkmcnt(0)')
e('s_barrier')
wg_flag(L.F2, 0)
stamp('flag2')
for q in range(4):
    e(f's_add_u32 s4, s{sW1S}, {4*q*32*3584}')
    for i in range(7):
        e(f's_add_u32 m0, s{sW1L}, {4*q*7168 + 1024*i}')
        e(f'buffer_load_dwordx4 v{W1O+i}, {srd(sW1)}, s4 offen lds')
NR2 = min(O('nr2', 4), 28 - NA1 - NA2)
emit(w2_dma_l(NR2, sRING))
poll_issue(16, 1, 29)
def c1_part(qs, first):
    for n, q in enumerate(qs):
        b = FR + 36*(n & 1)
        for t in range(7):
            for x in range(2): e(f'ds_read_b64_tr_b16 {p2(b+4*t+2*x)}, v{13 + q//2} offset:{4*7168*(q%2) + 3584*x + 32*t}')
    for n, q in enumerate(qs):
        b = FR + 36*(n & 1)
        e(f's_waitcnt lgkmcnt({14*(len(qs)-1-n)})')
        for t in range(7):
            c = '0' if (first and n == 0) else p4(C1+4*t)
            e(f'v_mfma_f32_16x16x32_bf16 {p4(C1+4*t)}, {p4(b+4*t)}, {p4(ONES)}, {c}')
e(f's_waitcnt vmcnt({14 + 2*NR2 + 1})')
c1_part([0, 1], True)
e(f's_waitcnt vmcnt({2*NR2 + 1})')
stamp('w1_landed')
c1_part([2, 3], False)
e('s_mov_b32 exec_lo, 0x00010001'); e('s_mov_b32 exec_hi, 0x00010001')
for t in range(7): e(f'ds_write_b128 v18, {p4(C1+4*t)} offset:{64*t}')
e('s_mov_b64 exec, -1')
if NR2:
    w2_raddr(sRING)
    e('s_waitcnt vmcnt(1)')
    e(f's_cmp_ge_u32 s{WV}, 2'); e('s_cbranch_scc1 L_R2A')
    emit(w2_read_l(NB1 + NB2, NR2)); e('s_branch L_R2D')
    e('L_R2A:'); emit(w2_read_l(NA1 + NA2, NR2)); e('L_R2D:')
poll(16, 1, 29, issued=0)
e('s_waitcnt lgkmcnt(0)')
e('s_barrier')
stamp('go2')
def h_dma(i):
    return [f's_add_u32 m0, s{sRING}, {2048*(i % NSLOT)}', f's_movk_i32 s9, {2048*i}',
            f'buffer_load_dwordx4 v{vHD}, {srd(sHB)}, s9 offen sc1 lds',
            f'buffer_load_dwordx4 v{vHD}, {srd(sHB)}, s9 offen offset:1024 sc1 lds']
LH = 4
for i in range(LH): emit(h_dma(i))
for w in range(4):
    dst = C1 if w == 0 else FR + 28*((w-1) % 2)
    for t in range(7): e(f'ds_read_b128 {p4(dst+4*t)}, v17 offset:{448*w + 64*t}')
    if w >= 1:
        e('s_waitcnt lgkmcnt(7)')
        if w >= 2:
            src = FR + 28*((w-2) % 2)
            for r in range(0, 28, 2): e(f'v_pk_add_f32 {p2(C1+r)}, {p2(C1+r)}, {p2(src+r)}')
e('s_waitcnt lgkmcnt(0)')
for r in range(0, 28, 2): e(f'v_pk_add_f32 {p2(C1+r)}, {p2(C1+r)}, {p2(FR+r)}')
e(f's_and_b32 s8, s{CS}, 7')
def g1_w(i):
    st = i & 1
    return [f'ds_read_b64_tr_b16 {p2(FR+36*st+8+4*t+2*x)}, v{vWa if i < 8 else vWb} offset:{7168*(i%8) + 3584*x + 32*t}' for t in range(7) for x in range(2)]
def g1_h(i):
    st = i & 1
    return [f'ds_read_b64_tr_b16 {p2(FR+36*st+4*s+2*x)}, v{vH0+s} offset:{2048*(i % NSLOT) + 1024*x}' for s in range(2) for x in range(2)]
emit(g1_w(0))
e(f's_waitcnt vmcnt({2*LH - 2})')
emit(g1_h(0))
OOL = []
for i in range(16):
    b = FR + 36*(i & 1); mf = []
    for t in range(7):
        for s in range(2):
            ac = ACC1 + 8*t + 4*s
            mf.append(f'v_mfma_f32_16x16x32_bf16 {p4(ac)}, {p4(b+8+4*t)}, {p4(b+4*s)}, {"0" if i == 0 else p4(ac)}')
    for s in range(2):
        mf.append(f'v_mfma_f32_16x16x32_bf16 {p4(S1+4*s)}, {p4(ONES)}, {p4(b+4*s)}, {"0" if i == 0 else p4(S1+4*s)}')
    fill = {}
    if i < 15:
        fill[0] = [f's_waitcnt vmcnt({2*(min(i + LH, 16) - i - 2)})'] + g1_h(i + 1)[:1]
        spread(16, g1_h(i + 1)[1:] + g1_w(i + 1), start=1, per=2, fill=fill)
    if i + LH < 16:
        d = h_dma(i + LH)
        fill.setdefault(10, []).extend(d[:2]); fill.setdefault(11, []).extend(d[2:3]); fill.setdefault(13, []).extend(d[3:])
    fill.setdefault(14, []).append(f's_cmp_eq_u32 s8, {i//2}')
    fill.setdefault(15, []).extend([f's_cbranch_scc1 L_S2_{i}', f'L_S2R_{i}:'])
    OOL.append((i, b))
    e('s_waitcnt lgkmcnt(0)')
    weave(mf, fill)
stamp('g1_done')
e(f's_lshl_b32 s8, s{RB}, 2'); e(f's_add_u32 s8, s8, s{WV}'); e('s_mul_i32 s4, s8, 112'); e(f's_mul_i32 s5, s{CS}, 7'); e('s_add_u32 s4, s4, s5')
e('s_lshl_b32 s4, s4, 10'); e(f's_add_u32 s10, s4, {L.H1F}'); e('s_add_u32 s11, s10, 4096')
for s in range(2): e(f'v_mul_f32 v{20+s}, 0x3b000000, v{S1+4*s}')
for s in range(2): bf16r(18 + s, 20 + s)
for t in range(7):
    o = FR + 4*t
    for s in range(2):
        ac = ACC1 + 8*t + 4*s
        sel = f'op_sel:[0,{s},0] op_sel_hi:[1,{s},1] neg_lo:[0,1,0] neg_hi:[0,1,0]'
        for hh in range(2): e(f'v_pk_fma_f32 {p2(ac+2*hh)}, {p2(C1+4*t+2*hh)}, v[18:19], {p2(ac+2*hh)} {sel}')
    for s in range(2):
        ac = ACC1 + 8*t + 4*s
        for hh in range(2): e(f'v_cvt_pk_bf16_f32 v{o+2*s+hh}, v{ac+2*hh}, v{ac+2*hh+1}')
    for r in range(4): e(f'v_pk_max_i16 v{o+r}, v{o+r}, 0')
    e(f'v_permlane16_swap_b32 v{o}, v{o+2}'); e(f'v_permlane16_swap_b32 v{o+1}, v{o+3}')
    e(f'buffer_store_dwordx4 {p4(o)}, v{vL16}, {srd(sWS)}, s{10 + t//4} offen offset:{1024*(t%4)} sc1')
e('s_mov_b32 s28, 0x22222222'); e('s_mov_b32 s29, s28'); e('s_mov_b32 s30, 0x44444444'); e('s_mov_b32 s31, s30'); e('s_mov_b32 s32, 0x88888888'); e('s_mov_b32 s33, s32')
e(f's_bitcmp1_b32 s{CS}, 3'); e('s_cselect_b64 vcc, -1, 0')
for r in range(4): e(f'v_cndmask_b32 v{S2+r}, v{S2+r}, v{S2+4+r}, vcc')
e(f'v_cndmask_b32 v22, v{S1}, v{S1+4}, vcc'); e('v_cndmask_b32 v23, v20, v21, vcc')
e(f'v_cndmask_b32 v24, v{S2}, v{S2+1}, s[28:29]'); e('v_mul_f32 v22, 0xbe000000, v22')
e(f'v_cndmask_b32 v24, v24, v{S2+2}, s[30:31]'); e('v_and_b32 v13, 15, v1')
e(f'v_cndmask_b32 v24, v24, v{S2+3}, s[32:33]'); e('v_lshlrev_b32 v13, 2, v13')
e('v_fmac_f32 v24, v22, v23')
e('s_lshl_b32 s9, s8, 10'); e(f's_and_b32 s5, s{CS}, 7'); e('s_lshl_b32 s5, s5, 7'); e('s_add_u32 s9, s9, s5')
e(f's_lshr_b32 s5, s{CS}, 3'); e('s_lshl_b32 s5, s5, 6'); e('s_add_u32 s9, s9, s5'); e(f's_add_u32 s9, s9, {L.PVAR}')
e('s_mov_b32 exec_lo, 0x00F0000F'); e('s_mov_b32 exec_hi, 0xF0000F00')
e(f'buffer_store_dword v24, v13, {srd(sWS)}, s9 offen sc1')
e('s_mov_b64 exec, -1')
e(f's_lshl_b32 s12, s{RT}, 16'); e(f's_lshl_b32 s5, s{CT}, 12'); e('s_add_u32 s12, s12, s5')
e(f's_and_b32 s5, s{WV}, 1'); e('s_lshl_b32 s5, s5, 11'); e('s_add_u32 s12, s12, s5'); e(f's_lshr_b32 s5, s{WV}, 1'); e('s_lshl_b32 s5, s5, 10'); e('s_add_u32 s12, s12, s5')
e(f's_add_u32 s12, s12, {L.HB}'); e('s_add_u32 s9, s12, 32768 - 1024')
e(f's_mov_b32 m0, s{sRING}')
e(f'buffer_load_dwordx4 v{vL16}, {srd(sWS)}, s12 offen sc1 lds')
e(f'buffer_load_dwordx4 v{vL16}, {srd(sWS)}, s9 offen offset:1024 sc1 lds')
NB3 = 28 - NB1 - NB2 - NR2; NA3 = 28 - NA1 - NA2 - NR2
assert NA3 == 0 or NA3 <= 4
n3a = min(NB3, 4); n3b = NB3 - n3a; assert n3b <= 8
e(f's_add_u32 s34, s{sRING}, 2048'); e(f's_lshl_b32 s35, s{WV}, 14')
e(f's_lshl_b32 s4, s{RB}, 4'); e(f's_add_u32 s4, s4, s{CS}'); e('s_lshl_b32 s4, s4, 2'); e(f's_add_u32 s4, s4, s{WV}'); e('s_lshl_b32 s4, s4, 7'); e(f's_add_u32 s4, s4, {L.F3}')
e(f's_lshr_b32 s11, s{RT}, 1'); e('s_lshl_b32 s11, s11, 6'); e(f's_lshl_b32 s5, s{WV}, 4'); e('s_add_u32 s11, s11, s5')
e(f's_and_b32 s5, s{RT}, 1'); e('s_lshl_b32 s5, s5, 1'); e('s_add_u32 s11, s11, s5'); e('s_lshl_b32 s11, s11, 7'); e(f's_add_u32 s11, s11, {L.F3}')
e('v_and_b32 v24, 3, v1'); e('v_lshlrev_b32 v24, 9, v24'); e('v_bfe_u32 v22, v1, 2, 1'); e('v_lshl_add_u32 v24, v22, 7, v24'); e('v_add_u32 v24, s11, v24')
e('v_lshlrev_b32 v23, 7, v1')
def flag3_and_touch(n):
    e(f's_waitcnt vmcnt({n})')
    flag_store(4)
    if O('h1t', 1):
        e('s_mov_b32 exec_hi, 0xffffff')
        e(f'buffer_load_dword v7, v23, {srd(sWS)}, s10 offen sc1')
        e('s_mov_b64 exec, -1')
NH = O('h1t', 1)
e(f's_cmp_ge_u32 s{WV}, 2'); e('s_cbranch_scc1 L_F3A')
emit(w2_dma_l(n3a, 34))
flag3_and_touch(2 + 2*n3a)
stamp('flag3')
e('s_barrier')
emit(w2_dma_l(n3b, 35))
if n3a:
    w2_raddr(34); e(f's_waitcnt vmcnt({NH + 2*n3b})'); emit(w2_read_l(28 - NB3, n3a))
if n3b:
    w2_raddr(35, 29); e('s_waitcnt vmcnt(0)'); emit(w2_read_l(28 - n3b, n3b, 29))
e('s_branch L_F3D')
e('L_F3A:')
emit(w2_dma_l(NA3, 34))
flag3_and_touch(2 + 2*NA3)
e('s_barrier')
if NA3:
    w2_raddr(34); e(f's_waitcnt vmcnt({NH})'); emit(w2_read_l(28 - NA3, NA3))
e('L_F3D:')
stamp('w2_done')
e(f's_or_b32 s4, s2, s{WV}'); e('s_cmp_lg_u32 s4, 0'); e('s_cbranch_scc1 L_NE')
e(f's_mov_b32 s4, {L.EPOCH}')
flag_store(4)
e('L_NE:')
e(f's_mul_i32 s4, s{RT}, {2*112*1024}'); e(f's_mul_i32 s5, s{WV}, {28*1024}'); e(f's_add_u32 s5, s5, {L.H1F}'); e('s_add_u32 s32, s4, s5'); e(f's_add_u32 s33, s32, {112*1024}')
e('v_lshrrev_b32 v20, 5, v1'); e('v_lshlrev_b32 v20, 10, v20'); e('v_and_b32 v21, 15, v1'); e('v_lshl_add_u32 v20, v21, 2, v20')
e('v_bfe_u32 v22, v1, 4, 1'); e('v_lshl_add_u32 v20, v22, 8, v20')
e(f's_lshl_b32 s35, s{RT}, 11'); e(f's_and_b32 s5, s{WV}, 1'); e('s_lshl_b32 s5, s5, 9'); e('s_add_u32 s35, s35, s5')
e(f's_lshr_b32 s5, s{WV}, 1'); e('s_lshl_b32 s5, s5, 6'); e('s_add_u32 s35, s35, s5'); e(f's_add_u32 s35, s35, {L.PVAR}')
e(f's_lshl_b32 s4, s{WV}, 14'); e(f'v_add_u32 v8, s4, v{vL16}')
e(f's_lshl_b32 s4, s{WV}, 8'); e(f's_add_u32 s4, s4, {PVS}'); e('v_lshl_add_u32 v9, v1, 2, s4')
e(f'v_lshlrev_b32 v11, 2, v21'); e('v_lshl_add_u32 v11, v22, 9, v11'); e(f'v_add_u32 v11, {PVS}, v11')
e(f's_and_b32 s4, s{WV}, 1'); e('s_lshl_b32 s4, s4, 12'); e(f's_lshr_b32 s5, s{WV}, 1'); e('s_lshl_b32 s5, s5, 11'); e('s_add_u32 s4, s4, s5'); e(f'v_add_u32 v12, s4, v{vL16}')
e('v_lshrrev_b32 v13, 5, v1'); e('v_lshlrev_b32 v13, 2, v13'); e('v_bfe_u32 v14, v1, 2, 2'); e('v_add_u32 v13, v13, v14'); e('v_lshlrev_b32 v13, 6, v13')
e('v_lshl_add_u32 v13, v22, 5, v13'); e('v_and_b32 v14, 3, v1'); e('v_lshl_add_u32 v13, v14, 3, v13'); e(f'v_add_u32 v13, s{sRING}, v13')
e('v_and_b32 v10, 31, v1'); e('v_lshlrev_b32 v10, 10, v10'); e('v_lshrrev_b32 v14, 5, v1'); e('v_lshl_add_u32 v10, v14, 4, v10')
e(f's_lshl_b32 s4, s{RT}, 16'); e(f's_lshl_b32 s5, s{CT}, 7'); e('s_add_u32 s4, s4, s5'); e(f's_and_b32 s5, s{WV}, 1'); e('s_lshl_b32 s5, s5, 6'); e('s_add_u32 s4, s4, s5')
e(f's_lshr_b32 s5, s{WV}, 1'); e('s_lshl_b32 s5, s5, 5'); e('s_add_u32 s38, s4, s5'); e('s_add_u32 s39, s38, 32768')
e('s_waitcnt lgkmcnt(0)')
poll(24, 1, 31)
stamp('go3')
LA = O('la', 8); NB = LA + 2; BF = 32
e(f'buffer_load_dword v22, v20, {srd(sWS)}, s35 offen sc1'); e(f'buffer_load_dword v23, v20, {srd(sWS)}, s35 offen offset:128 sc1')
def g2_load(i):
    p, ks = divmod(i, 28); r = BF + 4*(i % NB); x = []
    if ks % 4 == 0: x.append(f's_add_u32 s37, s{32+p}, {1024*ks}')
    x.append(f'buffer_load_dwordx4 {p4(r)}, v{vL16}, {srd(sWS)}, s37 offen offset:{1024*(ks%4)} sc1')
    return x
for i in range(LA): emit(g2_load(i))
RU = 160; PR = 96; RS = 14; OP = 140
for p in range(2):
    for q in range(2): e(f'ds_read_b64_tr_b16 {p2(RU+16+4*p+2*q)}, v13 offset:{1024*p + 512*q}')
def fin_reads(p): return [f'ds_read_b128 {p4(PR+16*q+4*w)}, v12 offset:{16384*w + 8192*p + 1024*q}' for q in range(2) for w in range(4)]
def fin_math(p):
    r = []
    for q in range(2):
        b = PR + 16*q
        if q == 0: r.append('s_waitcnt lgkmcnt(4)')
        else: r.append('s_waitcnt lgkmcnt(0)')
        for hh in range(2):
            r.append(f'v_pk_add_f32 {p2(b+2*hh)}, {p2(b+2*hh)}, {p2(b+4+2*hh)}'); r.append(f'v_pk_add_f32 {p2(b+8+2*hh)}, {p2(b+8+2*hh)}, {p2(b+12+2*hh)}')
        for hh in range(2): r.append(f'v_pk_add_f32 {p2(b+2*hh)}, {p2(b+2*hh)}, {p2(b+8+2*hh)}')
        for hh in range(2): r.append(f'v_pk_fma_f32 {p2(b+2*hh)}, {p2(b+2*hh)}, {p2(RS)}, {p2(RU+8*p+4*q+2*hh)} op_sel:[0,{p},0] op_sel_hi:[1,{p},1]')
        for hh in range(2): r.append(f'v_cvt_pk_bf16_f32 v{OP+4*p+2*q+hh}, v{b+2*hh}, v{b+2*hh+1}')
    o = OP + 4*p
    r += [f'v_permlane32_swap_b32 v{o}, v{o+2}', f'v_permlane32_swap_b32 v{o+1}, v{o+3}']
    return r
OUTPOL = {0: '', 1: ' sc1', 2: ' nt'}[O('outpol', 0)]
def fin_store(p): return f'buffer_store_dwordx4 {p4(OP+4*p)}, v10, {srd(sOUT)}, s{38+p} offen{OUTPOL}'
side = {}
side[0] = ['v_add_f32 v22, v22, v23', 'ds_write_b32 v9, v22']
side[2] = ['s_waitcnt lgkmcnt(0)'] + sum([unpack_l(RU+4*k, RU+4*k+1, RU+16+2*k) + unpack_l(RU+4*k+2, RU+4*k+3, RU+17+2*k) for k in range(2)], [])
side[3] = sum([unpack_l(RU+4*k, RU+4*k+1, RU+16+2*k) + unpack_l(RU+4*k+2, RU+4*k+3, RU+17+2*k) for k in range(2, 4)], [])
for q in range(8): side[29 + q] = [f'ds_write_b128 v8, a[{224+4*q}:{227+4*q}] offset:{1024*q}']
side[38] = ['s_waitcnt lgkmcnt(0)', 's_barrier',
            'ds_read2_b32 v[16:17], v11 offset0:0 offset1:16', 'ds_read2_b32 v[18:19], v11 offset0:64 offset1:80',
            'ds_read2_b32 v[20:21], v11 offset0:32 offset1:48', 'ds_read2_b32 v[22:23], v11 offset0:96 offset1:112']
side[39] = fin_reads(0)[:4]; side[40] = fin_reads(0)[4:]
rs = ['s_waitcnt lgkmcnt(8)', 'v_add_f32 v16, v16, v17', 'v_add_f32 v18, v18, v19', 'v_add_f32 v20, v20, v21', 'v_add_f32 v22, v22, v23',
      f'v_add_f32 v{RS}, v16, v18', f'v_add_f32 v{RS+1}, v20, v22', f'v_mul_f32 v{RS}, 0x3b000000, v{RS}', f'v_mul_f32 v{RS+1}, 0x3b000000, v{RS+1}',
      f'v_max_f32 v{RS}, 0, v{RS}', f'v_max_f32 v{RS+1}, 0, v{RS+1}'] + rstd_l([RS, RS+1]) + fin_math(0)
k = 41
while rs:
    side[k] = rs[:6]; rs = rs[6:]; k += 1
assert k <= 54
STORE_AT = k
issued = LA; extra_vm = 0
for i in range(56):
    p, ks = divmod(i, 28); r = BF + 4*(i % NB)
    young = issued - i - 1 + (1 if (extra_vm and i < ST_ISSUED) else 0)
    e(f's_waitcnt vmcnt({young})')
    sd = list(side.get(i, []))
    for dt in range(2):
        acc = f'a[{224+16*dt}:{239+16*dt}]' if p == 0 else f'v[{224+16*dt}:{239+16*dt}]'
        a = 8*ks + 4*dt
        e(f'v_mfma_f32_32x32x16_bf16 {acc}, a[{a}:{a+3}], {p4(r)}, {"0" if ks == 0 else acc}')
        if dt == 0:
            if issued < 56: emit(g2_load(issued)); issued += 1
            h = (len(sd) + 1)//2 if 's_barrier' not in sd else 0
            emit(sd[:h]); sd = sd[h:]
    emit(sd)
    if i == STORE_AT:
        e(fin_store(0)); extra_vm = 1; ST_ISSUED = issued
stamp('g2_done')
for q in range(8): e(f'ds_write_b128 v8, v[{224+4*q}:{227+4*q}] offset:{8192 + 1024*q}')
e('s_waitcnt lgkmcnt(0)')
e('s_barrier')
emit(fin_reads(1)); emit(fin_math(1)); e(fin_store(1))
if O('delay', 0):
    e(f's_mov_b32 s4, {O("delay", 0)}')
    e('L_DLY:')
    for _ in range(16): e('v_add_f32 v2, v2, v2')
    e('s_sub_u32 s4, s4, 1'); e('s_cmp_lg_u32 s4, 0'); e('s_cbranch_scc1 L_DLY')
if STAMPS:
    stamp('end')
    e('s_waitcnt vmcnt(0)')
    e('s_memrealtime s[72:73]')
    e(f's_cmp_lg_u32 s{WV}, 0'); e('s_cbranch_scc1 L_END')
    e('s_waitcnt lgkmcnt(0)')
    e('s_lshl_b32 s4, s2, 7'); e(f's_add_u32 s4, s4, {L.STAMP}')
    e('v_mov_b32 v2, 0')
    e('s_mov_b64 exec, 1')
    for i in range(16):
        e(f'v_mov_b32 v4, s{70+2*i}'); e(f'v_mov_b32 v5, s{71+2*i}')
        e(f'buffer_store_dwordx2 v[4:5], v2, {srd(sWS)}, s4 offen offset:{8*i}')
        e('s_nop 1')
e('L_END:')
e('s_endpgm')
for i, b in OOL:
    e(f'L_S2_{i}:')
    for s in range(2):
        e(f'v_mfma_f32_16x16x32_bf16 {p4(S2+4*s)}, {p4(b+4*s)}, {p4(b+4*s)}, {"0" if i % 2 == 0 else p4(S2+4*s)}')
    e(f's_branch L_S2R_{i}')

hdr = f'''; generated by gen10.py (own generator script)
; @launch grid=(256,1,1) block=(256,1,1) lds=163840
.amdgcn_target "amdgcn-amd-amdhsa--gfx950"
.text
.globl {NAME}_kernel
.p2align 8
.type {NAME}_kernel,@function
'''
ftr = f'''.fill 4096, 4, 0xBF800000
.section .rodata,"a"
.p2align 6
.amdhsa_kernel {NAME}_kernel
  .amdhsa_next_free_vgpr 512
  .amdhsa_next_free_sgpr 102
  .amdhsa_accum_offset 256
  .amdhsa_group_segment_fixed_size 0
  .amdhsa_kernarg_size 96
  .amdhsa_user_sgpr_count 2
  .amdhsa_user_sgpr_kernarg_segment_ptr 1
  .amdhsa_system_sgpr_workgroup_id_x 1
  .amdhsa_float_denorm_mode_32 3
.end_amdhsa_kernel
'''
open(OUT, 'w').write(hdr + A.text() + ftr)
if STAMPS: open('stamps.txt', 'w').write(' '.join(st_used))
print('stamps', st_used, 'instructions', sum(1 for i in A.ins if i.states))
```

```python
import sys
from asmlib import Asm
import layout as L
NAME = 'sequential_preLN__ssm_conv_h3__dense_activation_relu__prompt'
args = sys.argv[1:]
OUT = [a for a in args if not a.startswith('--')][0]
opt = {}
for a in args:
    if a.startswith('--'):
        k, _, v = a[2:].partition('='); opt[k] = v
def O(name, d): return int(opt.get(name, d))
STAMPS = 'stamps' in opt
ST_SEL = opt.get('stamps', '').replace(',', ' ').split()
NT = ' nt'
A = Asm(); e = A

WV = 3
sK, sV, sSH, sQ, sSK, sWS, sW1, sW2, sOUT, sHB = 28, 32, 36, 40, 44, 48, 52, 56, 60, 64
G, J = 68, 69
EPO, DPAIR, TAG, SPIN = 16, 17, 18, 19
RB, CS, RT, CT = 22, 23, 24, 25
sD, sUB, sKV0, sKV1, sXT0, sXT1, sSTA, sW2S, sW2L, sW1S, sW1L, sRING = 7, 6, 8, 9, 10, 11, 12, 13, 14, 15, 20, 21
sEX, sES, sEH = 28, 30, 32
def srd(r): return f's[{r}:{r+3}]'
st_used = []
def stamp(name):
    if STAMPS and name in ST_SEL:
        r = 76 + 2*len(st_used); assert r + 1 <= 101
        e(f's_memtime s[{r}:{r+1}]'); st_used.append(name)

RING = 114688; RINGW = 12288; NSLOT = 5
KPITCH = 4384; KCH = 8*KPITCH
KC0 = 84992; U0 = 155136; UPITCH = 4352
TB1 = U0; TB2 = 0
CNT = 81920
C1S = RING + NSLOT*2048
PVS = C1S
SPINMAX = 1 << 16
NA1 = O('na1', 12); NB1 = O('nb1', 8)
assert 2*(NA1 + NB1)*2048 <= CNT

vB, vA, vSHo, vL16, vS0, vS1, vXR, vT1w, vT2w, vTr, vT1r, vGS, vSTo = 2, 3, 4, 5, 6, 7, 8, 9, 10, 11, 12, 13, 14
vK, vU, vX, vST, vF1B, vKV0, vKV1, vHBo, vF1, vKCW, vW2D, vW2R = range(15, 27)
vTAG, vZ = 250, 251
W1O = 240
SH, K, V, X, XR, SKW, WP, KF, VF, ACC, PK, TR = 32, 40, 54, 62, 70, 80, 96, 112, 140, 156, 172, 180

def mk_srd(r, lo, nrec):
    e(f's_mov_b64 s[{r}:{r+1}], s[{lo}:{lo+1}]'); e(f's_mov_b32 s{r+2}, {nrec}'); e(f's_mov_b32 s{r+3}, 0x20000')
def poll_issue(reg, n, tmp):
    w = {1: 'dword', 2: 'dwordx2', 4: 'dwordx4'}[n]
    d = f'v{tmp}' if n == 1 else f'v[{tmp}:{tmp+n-1}]'
    e(f'buffer_load_{w} {d}, v{reg}, {srd(sWS)}, 0 offen sc1')
def poll(reg, n, tmp, issued=None):
    lab = e.label('POLL'); done = e.label('PDONE'); chk = e.label('PCHK')
    e(f's_mov_b32 s{SPIN}, 0')
    if issued is not None:
        e(f's_waitcnt vmcnt({issued})'); e(f's_branch {chk}')
    else:
        e('s_mov_b64 vcc, -1')
    e(f'{lab}:')
    e('s_mov_b64 exec, vcc')
    poll_issue(reg, n, tmp)
    e(f's_add_u32 s{SPIN}, s{SPIN}, 1')
    e('s_waitcnt vmcnt(0)')
    e(f'{chk}:')
    if n == 1:
        e(f'v_cmp_ne_u32 vcc, s{TAG}, v{tmp}')
    else:
        for i in range(n): e(f'v_xor_b32 v{tmp+i}, s{TAG}, v{tmp+i}')
        e(f'v_or3_b32 v{tmp}, v{tmp}, v{tmp+1}, v{tmp+2}'); e(f'v_or_b32 v{tmp}, v{tmp}, v{tmp+3}')
        e(f'v_cmp_ne_u32 vcc, 0, v{tmp}')
    e(f's_cbranch_vccz {done}')
    e(f's_cmp_lt_u32 s{SPIN}, {SPINMAX}')
    e(f's_cbranch_scc1 {lab}')
    e(f'{done}:')
    e('s_mov_b64 exec, -1')
def flag_store(soff):
    e('s_mov_b64 exec, 1')
    e(f'buffer_store_dword v{vTAG}, v{vZ}, {srd(sWS)}, s{soff} offen sc1')
    e('s_mov_b64 exec, -1')
def wg_flag(base, wave):
    lab = e.label('NF')
    e(f's_cmp_lg_u32 s{WV}, {wave}'); e(f's_cbranch_scc1 {lab}')
    e('s_lshl_b32 s4, s2, 7'); e(f's_add_u32 s4, s4, {base}')
    flag_store(4)
    e(f'{lab}:')
def bf16r(dst, src):
    e(f'v_cvt_pk_bf16_f32 v{dst}, v{src}, v{src}'); e(f'v_and_b32 v{dst}, 0xffff0000, v{dst}')
def unpack_l(dlo, dhi, src): return [f'v_lshlrev_b32 v{dlo}, 16, v{src}', f'v_and_b32 v{dhi}, 0xffff0000, v{src}']
def unpack(dlo, dhi, src):
    for x in unpack_l(dlo, dhi, src): e(x)
def p2(b): return f'v[{b}:{b+1}]'
def p4(b): return f'v[{b}:{b+3}]'
def rstd_l(regs):
    r = []
    def rnd():
        for v in regs: r.append(f'v_cvt_pk_bf16_f32 v{v}, v{v}, v{v}')
        for v in regs: r.append(f'v_and_b32 v{v}, 0xffff0000, v{v}')
    rnd()
    for v in regs: r.append(f'v_add_f32 v{v}, 0x3727c5ac, v{v}')
    rnd()
    for v in regs: r.append(f'v_sqrt_f32 v{v}, v{v}')
    rnd()
    for v in regs: r.append(f'v_rcp_f32 v{v}, v{v}')
    return r
def weave(mf, fill):
    for i, x in enumerate(mf):
        e(x)
        for y in fill.get(i, []): e(y)
def spread(n, items, start=0, per=2, fill=None):
    fill = fill if fill is not None else {}
    i = start
    for it in items:
        while len(fill.setdefault(i, [])) >= per: i += 1
        assert i < n, (i, n)
        fill[i].append(it)
    return fill
def w2_dma_l(n, base, k0=0):
    return [[f's_add_u32 m0, s{base}, {2048*k0 + 1024*k}', f'buffer_load_dwordx4 v{vW2D}, {srd(sW2)}, s{sW2S} offen lds', f's_add_u32 s{sW2S}, s{sW2S}, 8192'] for k in range(2*n)]
def w2_read_l(ks0, n, r0=27):
    return [f'ds_read_b64_tr_b16 a[{8*(ks0+k)+4*dt+2*x}:{8*(ks0+k)+4*dt+2*x+1}], v{r0+dt} offset:{2048*k + 512*x}' for k in range(n) for dt in range(2) for x in range(2)]
def w2_raddr(base, r0=27):
    e(f'v_add_u32 v{r0}, s{base}, v{vW2R}'); e(f'v_xor_b32 v{r0+1}, 64, v{r0}')
def emit(groups):
    for g in groups:
        if isinstance(g, str): e(g)
        else:
            for x in g: e(x)

e(f'{NAME}_kernel:')
e('s_cmp_ge_u32 s2, 256')
e('s_cbranch_scc1 L_END')
e('s_load_dwordx16 s[4:19], s[0:1], 0')
e('s_load_dwordx8 s[20:27], s[0:1], 64')
e('s_getpc_b64 s[30:31]')
e('v_lshlrev_b32 v240, 7, v0')
e('global_load_dword v255, v240, s[30:31]')
if STAMPS:
    e('s_memrealtime s[70:71]'); e('s_memtime s[74:75]')
e('v_and_b32 v1, 63, v0')
e('v_lshrrev_b32 v2, 6, v0')
e(f's_and_b32 s{G}, s2, 7')
e(f'v_readfirstlane_b32 s{WV}, v2')
e(f's_lshr_b32 s{J}, s2, 3')
e('v_and_b32 v4, 15, v0')
e('v_lshrrev_b32 v2, 4, v0')
e('v_lshlrev_b32 v2, 12, v2')
e('v_lshl_add_u32 v2, v4, 3, v2')
e(f's_lshl_b32 vcc_lo, s{J}, 16')
e(f's_lshl_b32 vcc_hi, s{G}, 7')
e('s_add_u32 vcc_lo, vcc_lo, vcc_hi')
e(f'v_add_u32 v{vB}, vcc_lo, v2')
e(f'v_add_u32 v{vA}, 0xfffff400, v{vB}')
e(f's_lshl_b32 vcc_lo, s{G}, 9')
e('v_lshlrev_b32 v4, 5, v4')
e(f'v_add_u32 v{vSHo}, vcc_lo, v4')
e(f'v_lshlrev_b32 v{vL16}, 4, v1')
for r in (sSH, sK, sV, sQ):
    e(f's_mov_b32 s{r+2}, {4096 if r == sSH else 2097152}'); e(f's_mov_b32 s{r+3}, 0x20000')
e(f'v_lshrrev_b32 v{vXR}, 5, v1'); e('v_and_b32 v27, 31, v1'); e(f'v_lshlrev_b32 v{vXR}, 10, v{vXR}'); e(f'v_lshl_add_u32 v{vXR}, v27, 4, v{vXR}')
e('s_waitcnt lgkmcnt(0)')
stamp('karg')
e(f's_mov_b64 s[{sK}:{sK+1}], s[6:7]')
for i in range(4): e(f'buffer_load_dwordx2 v[{K+6+2*i}:{K+7+2*i}], v{vB}, {srd(sK)}, 0 offen offset:{1024*i}{NT}')
e(f's_mov_b64 s[{sSH}:{sSH+1}], s[10:11]')
e(f'buffer_load_dwordx4 {p4(SH)}, v{vSHo}, {srd(sSH)}, 0 offen')
e(f'buffer_load_dwordx4 {p4(SH+4)}, v{vSHo}, {srd(sSH)}, 0 offen offset:16')
e(f's_mov_b64 s[{sV}:{sV+1}], s[8:9]')
for i in range(4): e(f'buffer_load_dwordx2 v[{V+2*i}:{V+1+2*i}], v{vB}, {srd(sV)}, 0 offen offset:{1024*i}{NT}')
for i in range(3): e(f'buffer_load_dwordx2 v[{K+2*i}:{K+1+2*i}], v{vA}, {srd(sK)}, 0 offen offset:{1024*i}{NT}')
e(f's_mov_b64 s[{sQ}:{sQ+1}], s[4:5]')
for i in range(4): e(f'buffer_load_dwordx2 v[{X+2*i}:{X+1+2*i}], v{vB}, {srd(sQ)}, 0 offen offset:{1024*i}{NT}')
e('s_lshl_b32 s4, s2, 13'); e(f's_lshl_b32 s5, s{WV}, 11'); e('s_add_u32 s4, s4, s5')
for i in range(2): e(f'buffer_load_dwordx4 {p4(XR+4*i)}, v{vXR}, {srd(sQ)}, s4 offen offset:{512*i}{NT}')
NA = 6
e(f's_lshl_b32 s4, s{G}, 6'); e(f's_lshl_b32 s5, s{J}, 1'); e('s_add_u32 s4, s4, s5')
e('s_lshl_b32 s6, s4, 1')
e(f's_load_dword s{DPAIR}, s[14:15], s6')
e(f's_load_dword s{EPO}, s[26:27], {L.EPOCH}')
e(f's_lshr_b32 s5, s{WV}, 1'); e('s_add_u32 s5, s4, s5'); e('s_lshl_b32 s5, s5, 12')
e(f's_add_u32 s{sSK}, s12, s5'); e(f's_addc_u32 s{sSK+1}, s13, 0'); e(f's_mov_b32 s{sSK+2}, 4096'); e(f's_mov_b32 s{sSK+3}, 0x20000')
e(f's_and_b32 vcc_lo, s{WV}, 1')
e(f's_add_u32 s{sD}, s4, vcc_lo')
mk_srd(sWS, 26, L.WS_USED); mk_srd(sOUT, 22, 2097152); mk_srd(sW1, 18, 512*1792*2); mk_srd(sW2, 20, 512*1792*2)
e(f's_mul_i32 s{sUB}, vcc_lo, {UPITCH}'); e(f's_add_u32 s{sUB}, s{sUB}, {U0}')
e('s_lshl_b32 vcc_hi, vcc_lo, 11')
e(f'v_add_u32 v{vS1}, vcc_hi, v{vL16}'); e(f'v_add_u32 v{vS0}, -16, v{vS1}')
e(f's_lshr_b32 s{RB}, s{G}, 1'); e(f's_lshl_b32 s{RB}, s{RB}, 2'); e(f's_and_b32 s5, s{J}, 3'); e(f's_add_u32 s{RB}, s{RB}, s5')
e(f's_and_b32 s{CS}, s{G}, 1'); e(f's_lshl_b32 s{CS}, s{CS}, 3'); e(f's_lshr_b32 s4, s{J}, 2'); e(f's_add_u32 s{CS}, s{CS}, s4')
e(f's_lshl_b32 s{RT}, s{G}, 2'); e(f's_add_u32 s{RT}, s{RT}, s5'); e(f's_lshr_b32 s{CT}, s2, 5')
e(f's_lshl_b32 s5, s{RB}, 2'); e(f's_add_u32 s5, s5, s{WV}'); e('s_lshl_b32 s5, s5, 15'); e(f's_add_u32 s5, s5, {L.HB}')
e(f's_add_u32 s{sHB}, s26, s5'); e(f's_addc_u32 s{sHB+1}, s27, 0'); e(f's_mov_b32 s{sHB+2}, 32768'); e(f's_mov_b32 s{sHB+3}, 0x20000')
e('v_and_b32 v27, 15, v0'); e('v_lshrrev_b32 v28, 4, v0'); e('v_and_b32 v29, 7, v0'); e('v_lshlrev_b32 v30, 1, v29')
e('v_xor_b32 v28, v28, v30'); e('v_lshlrev_b32 v27, 9, v27')
e(f'v_lshl_add_u32 v{vT2w}, v28, 3, v27')
e('v_xor_b32 v28, 15, v28'); e(f'v_lshl_add_u32 v{vT1w}, v28, 3, v27'); e(f'v_add_u32 v{vT1w}, {TB1}, v{vT1w}')
e('v_lshrrev_b32 v28, 5, v0'); e('v_xor_b32 v28, v28, v29'); e('v_lshrrev_b32 v30, 3, v0')
e(f'v_lshlrev_b32 v{vTr}, 7, v30'); e(f'v_lshl_add_u32 v{vTr}, v28, 4, v{vTr}'); e(f'v_add_u32 v{vT1r}, {TB1}, v{vTr}')
e(f'v_lshlrev_b32 v{vGS}, 12, v30'); e(f'v_lshl_add_u32 v{vGS}, v29, 4, v{vGS}')
e(f's_lshl_b32 s4, s{G}, 18'); e(f's_lshl_b32 s5, s{J}, 7')
e(f's_add_u32 s{sXT0}, s4, {L.XT}'); e(f's_add_u32 s{sXT0}, s{sXT0}, s5'); e(f's_add_u32 s{sXT1}, s{sXT0}, 131072')
e(f's_add_u32 s{sKV0}, s4, {L.KVR + 4096 - 128}'); e(f's_sub_u32 s{sKV0}, s{sKV0}, s5'); e(f's_add_u32 s{sKV1}, s{sKV0}, 131072')
e(f'v_mov_b32 v{vZ}, 0')
e(f'v_and_b32 v{vSTo}, 1, v1'); e(f'v_lshlrev_b32 v{vSTo}, 4, v{vSTo}'); e('v_lshrrev_b32 v27, 5, v1'); e(f'v_lshl_add_u32 v{vSTo}, v27, 2, v{vSTo}')
e(f's_lshl_b32 s{sSTA}, s2, 6'); e(f's_lshr_b32 s5, s{WV}, 1'); e('s_lshl_b32 s5, s5, 5'); e(f's_add_u32 s{sSTA}, s{sSTA}, s5')
e('s_lshl_b32 s5, vcc_lo, 3'); e(f's_add_u32 s{sSTA}, s{sSTA}, s5'); e(f's_add_u32 s{sSTA}, s{sSTA}, {L.STATS}')
e('v_and_b32 v27, 15, v1'); e('v_lshrrev_b32 v28, 4, v1')
e(f'v_and_b32 v{vK}, 7, v1'); e(f's_movk_i32 s4, {KPITCH}'); e(f'v_mul_u32_u24 v{vK}, s4, v{vK}')
e('v_bfe_u32 v29, v1, 3, 1'); e(f'v_lshl_add_u32 v{vK}, v29, 8, v{vK}')
e('v_lshlrev_b32 v29, 4, v28'); e(f'v_sub_u32 v{vK}, v{vK}, v29')
e(f's_mul_i32 s5, vcc_lo, {KCH}'); e(f's_add_u32 s5, s5, {KC0 + 48}'); e(f'v_add_u32 v{vK}, s5, v{vK}')
e(f's_lshr_b32 s4, s{WV}, 1'); e(f's_mul_i32 s5, s4, {KCH}'); e(f's_add_u32 s5, s5, {KC0}'); e(f'v_add_u32 v{vKCW}, s5, v{vS1}')
e('v_add_u32 v29, v27, v28'); e('v_lshlrev_b32 v29, 4, v29'); e(f's_add_u32 s5, s{sUB}, 288'); e(f'v_sub_u32 v{vU}, s5, v29')
e('v_lshrrev_b32 v29, 5, v1'); e('v_lshlrev_b32 v29, 7, v29'); e('v_lshl_add_u32 v29, v27, 3, v29')
e('v_bfe_u32 v30, v1, 4, 1'); e('v_lshl_add_u32 v29, v30, 2, v29')
e(f'v_lshlrev_b32 v{vX}, 1, v29'); e(f'v_lshlrev_b32 v{vST}, 3, v29')
e(f'v_lshlrev_b32 v{vF1B}, 7, v1'); e(f'v_add_u32 v{vF1B}, {L.F1B}, v{vF1B}')
e(f's_cmp_lt_u32 s{WV}, 2'); e('s_cselect_b32 s26, 2, 0'); e('s_cselect_b32 s27, 4, 6')
e(f's_add_u32 s5, s{sUB}, 4088 - 512'); e(f'v_sub_u32 v29, s5, v{vX}')
e('s_lshl_b32 s4, s26, 9'); e(f'v_subrev_u32 v{vKV0}, s4, v29'); e('s_lshl_b32 s4, s27, 9'); e(f'v_subrev_u32 v{vKV1}, s4, v29')
e(f'v_lshlrev_b32 v{vHBo}, 3, v30'); e('v_lshrrev_b32 v29, 5, v1'); e(f'v_lshl_add_u32 v{vHBo}, v29, 2, v{vHBo}')
e('v_bfe_u32 v29, v1, 2, 2'); e(f'v_add_u32 v{vHBo}, v{vHBo}, v29'); e(f'v_lshlrev_b32 v{vHBo}, 15, v{vHBo}')
e('v_and_b32 v29, 3, v1'); e(f'v_lshl_add_u32 v{vHBo}, v29, 4, v{vHBo}')
e(f'v_and_b32 v{vF1}, 31, v1'); e(f'v_lshlrev_b32 v{vF1}, 10, v{vF1}')
e(f's_lshl_b32 s4, s{G}, 7'); e(f's_add_u32 s4, s4, {L.F1}'); e(f'v_add_u32 v{vF1}, s4, v{vF1}')
e(f'v_lshrrev_b32 v{vW2D}, 3, v1'); e(f'v_lshlrev_b32 v{vW2D}, 10, v{vW2D}')
e('v_lshlrev_b32 v29, 2, v30'); e('v_and_b32 v31, 7, v1'); e('v_xor_b32 v29, v29, v31'); e(f'v_lshl_add_u32 v{vW2D}, v29, 4, v{vW2D}')
e('v_lshrrev_b32 v29, 5, v1'); e('v_lshlrev_b32 v29, 3, v29'); e('v_bfe_u32 v31, v1, 2, 2'); e('v_add_u32 v29, v29, v31'); e('v_lshlrev_b32 v29, 7, v29')
e('v_lshl_add_u32 v29, v30, 5, v29'); e('v_and_b32 v31, 3, v1'); e('v_lshl_add_u32 v29, v31, 3, v29')
e('v_bfe_u32 v31, v1, 3, 1'); e(f'v_lshl_add_u32 v{vW2R}, v31, 6, v29')
e(f's_mul_i32 s{sW2S}, s{WV}, {448*1024}'); e(f's_lshl_b32 s4, s{CT}, 7'); e(f's_add_u32 s{sW2S}, s{sW2S}, s4')
e(f's_mul_i32 s4, vcc_lo, {NA1*2048}'); e(f's_mul_i32 s5, vcc_lo, {NB1*2048}'); e(f's_add_u32 s5, s5, {2*NA1*2048}')
e(f's_cmp_lt_u32 s{WV}, 2'); e(f's_cselect_b32 s{sW2L}, s5, s4')
e('s_movk_i32 s4, 4682'); e('s_movk_i32 s5, 3360')
for i in range(7):
    e(f'v_add_u32 v{W1O+i}, {64*i}, v1')
    e(f'v_mul_u32_u24 v31, s4, v{W1O+i}'); e('v_lshrrev_b32 v31, 16, v31')
    e(f'v_lshlrev_b32 v{W1O+i}, 4, v{W1O+i}'); e(f'v_mad_u32_u24 v{W1O+i}, v31, s5, v{W1O+i}')
e(f's_mul_i32 s{sW1S}, s{WV}, {32*3584}'); e(f's_mul_i32 s4, s{CS}, 224'); e(f's_add_u32 s{sW1S}, s{sW1S}, s4')
e(f's_mul_i32 s{sW1L}, s{WV}, 7168')
e(f's_mul_i32 s{sRING}, s{WV}, {RINGW}'); e(f's_add_u32 s{sRING}, s{sRING}, {RING}')
for n in range(4): e(f'v_mov_b32 v{TR+n}, 0')
e('v_lshrrev_b32 v29, 4, v0'); e(f's_movk_i32 s4, {KPITCH}'); e('v_and_b32 v31, 15, v0'); e('v_lshlrev_b32 v31, 4, v31')
e('v_mad_u32_u24 v29, v29, s4, v31'); e(f'v_add_u32 v29, {KC0}, v29')
e(f'ds_write_b128 v29, {p4(TR)}')
e(f'v_add_u32 v247, {U0 + 4096}, v31')
e(f'v_mov_b32 v248, {CNT}')
e(f'ds_write_b32 v248, v{vZ}')
def tap(t, o):
    for cp in range(2):
        acc = ACC + 4*o + 2*cp; kf = KF + 4*(o + 3 - t) + 2*cp; w = WP + 4*t + 2*cp
        if t == 0: e(f'v_pk_mul_f32 {p2(acc)}, {p2(kf)}, {p2(w)}')
        else: e(f'v_pk_fma_f32 {p2(acc)}, {p2(kf)}, {p2(w)}, {p2(acc)}')
e(f's_waitcnt vmcnt({NA + 9})')
for i in range(3, 7):
    for cp in range(2): unpack(KF + 4*i + 2*cp, KF + 4*i + 2*cp + 1, K + 2*i + cp)
e(f's_waitcnt vmcnt({NA + 7})')
for cp in range(2):
    for hf in range(2):
        d0 = SH + 4*cp + 2*hf
        unpack(WP + 0 + 2*cp + hf, WP + 4 + 2*cp + hf, d0)
        unpack(WP + 8 + 2*cp + hf, WP + 12 + 2*cp + hf, d0 + 1)
for t in range(4):
    for o in range(t, 4): tap(t, o)
e(f's_waitcnt vmcnt({NA + 3})')
for o in range(4):
    for cp in range(2): unpack(VF + 4*o + 2*cp, VF + 4*o + 2*cp + 1, V + 2*o + cp)
e(f's_waitcnt vmcnt({NA})')
stamp('kv_arrived')
for i in range(3):
    for cp in range(2): unpack(KF + 4*i + 2*cp, KF + 4*i + 2*cp + 1, K + 2*i + cp)
for t in range(1, 4):
    for o in range(0, t): tap(t, o)
for o in (3, 2, 1, 0):
    for cp in range(2): e(f'v_pk_mul_f32 {p2(ACC+4*o+2*cp)}, {p2(ACC+4*o+2*cp)}, {p2(VF+4*o+2*cp)}')
for i in range(4):
    e(f'v_cvt_pk_bf16_f32 v{PK+2*i}, v{ACC+12+i}, v{ACC+8+i}')
    e(f'v_cvt_pk_bf16_f32 v{PK+2*i+1}, v{ACC+4+i}, v{ACC+i}')
    e(f'ds_write_b64 v{vT1w}, {p2(PK+2*i)} offset:{128*i}')
e('s_waitcnt lgkmcnt(0)')
e('s_barrier')
e(f'ds_read_b128 {p4(TR)}, v{vT1r}')
e(f'ds_read_b128 {p4(TR+4)}, v{vT1r} offset:4096')
e(f's_mul_i32 s{TAG}, s{EPO}, 1664525'); e(f's_add_u32 s{TAG}, s{TAG}, 1013904223')
e('s_mov_b32 s4, 0x05040100'); e('s_mov_b32 s5, 0x07060302')
e(f'v_mov_b32 v{vTAG}, s{TAG}')
e('s_waitcnt lgkmcnt(1)')
e(f'buffer_store_dwordx4 {p4(TR)}, v{vGS}, {srd(sWS)}, s{sKV0} offen sc1')
e('s_waitcnt lgkmcnt(0)')
e(f'buffer_store_dwordx4 {p4(TR+4)}, v{vGS}, {srd(sWS)}, s{sKV1} offen sc1')
stamp('kv_stored')
e('s_waitcnt vmcnt(4)')
for cp in range(2):
    for hf in range(2):
        i = 2*cp + hf
        e(f'v_perm_b32 v{PK+2*i}, v{X+2+cp}, v{X+cp}, s{4+hf}')
        e(f'v_perm_b32 v{PK+2*i+1}, v{X+6+cp}, v{X+4+cp}, s{4+hf}')
        e(f'ds_write_b64 v{vT2w}, {p2(PK+2*i)} offset:{TB2+128*i}')
e('s_waitcnt lgkmcnt(0)')
e('s_barrier')
e(f'ds_read_b128 {p4(TR+8)}, v{vTr} offset:{TB2}')
e(f'ds_read_b128 {p4(TR+12)}, v{vTr} offset:{TB2+4096}')
e('s_waitcnt vmcnt(2)')
F = KF; S = KF + 16
for i in range(4): unpack(F + 2*i, F + 2*i + 1, XR + i)
e('s_waitcnt lgkmcnt(1)')
e(f'buffer_store_dwordx4 {p4(TR+8)}, v{vGS}, {srd(sWS)}, s{sXT0} offen sc1')
for i in range(4, 8): unpack(F + 2*i, F + 2*i + 1, XR + i)
e('s_waitcnt lgkmcnt(0)')
e(f'buffer_store_dwordx4 {p4(TR+12)}, v{vGS}, {srd(sWS)}, s{sXT1} offen sc1')
e(f'v_pk_add_f32 {p2(S)}, {p2(F)}, {p2(F+2)}'); e(f'v_pk_mul_f32 {p2(S+2)}, {p2(F)}, {p2(F)}')
e(f'v_pk_fma_f32 {p2(S+2)}, {p2(F+2)}, {p2(F+2)}, {p2(S+2)}')
for i in range(2, 8):
    e(f'v_pk_add_f32 {p2(S)}, {p2(S)}, {p2(F+2*i)}'); e(f'v_pk_fma_f32 {p2(S+2)}, {p2(F+2*i)}, {p2(F+2*i)}, {p2(S+2)}')
e(f'v_add_f32 v{S}, v{S}, v{S+1}'); e(f'v_add_f32 v{S+1}, v{S+2}, v{S+3}')
for mode in ('quad_perm:[1,0,3,2]', 'quad_perm:[2,3,0,1]', 'row_half_mirror', 'row_mirror'):
    for r in (S, S+1): e(f'v_add_f32_dpp v{r}, v{r}, v{r} {mode} row_mask:0xf bank_mask:0xf')
e(f'v_mov_b32 v{S+2}, v{S}'); e(f'v_mov_b32 v{S+3}, v{S+1}')
e(f'v_permlane16_swap_b32 v{S}, v{S+2}'); e(f'v_permlane16_swap_b32 v{S+1}, v{S+3}')
e(f'v_pk_add_f32 {p2(S)}, {p2(S)}, {p2(S+2)}')
e(f'v_mul_f32 v{S}, 0x3b000000, v{S}'); e(f'v_mul_f32 v{S+1}, 0x3b000000, v{S+1}')
e(f'v_fma_f32 v{S+1}, -v{S}, v{S}, v{S+1}'); e(f'v_max_f32 v{S+1}, 0, v{S+1}')
bf16r(S, S)
emit(rstd_l([S+1]))
e('s_mov_b32 vcc_lo, 0xaaaaaaaa'); e('s_mov_b32 vcc_hi, 0xaaaaaaaa')
e(f'v_mul_f32 v{S}, v{S}, -v{S+1}')
e(f'v_cndmask_b32 v{S}, v{S+1}, v{S}, vcc')
e('s_mov_b32 exec_lo, 3'); e('s_mov_b32 exec_hi, 3')
e(f'buffer_store_dword v{S}, v{vSTo}, {srd(sWS)}, s{sSTA} offen sc1')
e('s_mov_b64 exec, -1')
e(f'buffer_load_dwordx4 {p4(SKW)}, v{vS0}, {srd(sSK)}, 0 offen{NT}')
e(f'buffer_load_dwordx4 {p4(SKW+4)}, v{vS1}, {srd(sSK)}, 0 offen{NT}')
e(f'buffer_load_dwordx4 {p4(SKW+8)}, v{vS1}, {srd(sSK)}, 0 offen offset:1008{NT}')
e(f'buffer_load_dwordx4 {p4(SKW+12)}, v{vS1}, {srd(sSK)}, 0 offen offset:1024{NT}')
e(f's_lshl_b32 s{sXT0}, s{sD}, 12'); e(f's_add_u32 s{sXT0}, s{sXT0}, {L.XT}')
e(f's_lshl_b32 s{sXT1}, s{sD}, 6'); e(f's_add_u32 s{sXT1}, s{sXT1}, {L.HB}')
for pi in range(2):
    e(f's_lshl_b32 s4, s{26+pi}, 9'); e(f's_add_u32 s{sEX+pi}, s4, s{sXT0}')
    e(f's_lshl_b32 s4, s{26+pi}, 11'); e(f's_add_u32 s{sES+pi}, s4, {L.STATS}')
    e(f's_lshl_b32 s4, s{26+pi}, 18'); e(f's_add_u32 s{sEH+pi}, s4, s{sXT1}')
e(f's_lshl_b32 s34, s{sD}, 12'); e(f's_add_u32 s34, s34, {L.KVR}')
e('s_and_b32 s35, s2, 63'); e('s_lshl_b32 s35, s35, 7'); e('s_lshr_b32 s4, s2, 6'); e('s_lshl_b32 s4, s4, 2'); e('s_add_u32 s35, s35, s4'); e(f's_add_u32 s35, s35, {L.F1B}')
for n in range(4): e(f'v_mov_b32 v{PK+n}, 0')
e('v_mov_b32 v249, 1')
e('s_waitcnt vmcnt(7)')
e('s_barrier')
wg_flag(L.F1, 0)
stamp('flag1')
e('s_mov_b64 exec, 0xffff')
e(f'ds_write_b128 v247, {p4(PK)}'); e(f'ds_write_b128 v247, {p4(PK)} offset:{UPITCH}')
e('s_mov_b64 exec, -1')
def arrive():
    lab = e.label('NL')
    e('s_mov_b64 exec, 1')
    e('ds_add_rtn_u32 v249, v248, v249')
    e('s_waitcnt lgkmcnt(0)')
    e('v_cmp_ne_u32 vcc, 3, v249')
    e(f's_cbranch_vccnz {lab}')
    e(f'buffer_store_dword v{vTAG}, v{vZ}, {srd(sWS)}, s35 offen sc1')
    e(f'{lab}:')
    e('s_mov_b64 exec, -1')
def kcopies():
    for i in range(2):
        W = SKW + 8*i; Oa = 112 + 24*i; O2 = 120 + 24*i; M = 128 + 24*i
        for sh in (4, 8): e(f'ds_write_b128 v{vKCW}, {p4(W+sh//2)} offset:{(sh-1)*KPITCH + 256 + 1024*i}')
        for n in range(6): e(f'v_alignbit_b32 v{Oa+n}, v{W+n+1}, v{W+n}, 16')
        for n in range(6): e(f'v_alignbit_b32 v{O2+n}, v{W+n+2}, v{W+n+1}, 16')
        for n in range(6): e(f'v_mov_b32 v{M+n}, v{W+n+1}')
        src = {1: Oa, 2: M, 3: O2, 5: Oa+2, 6: M+2, 7: O2+2}
        for sh in (1, 5, 3, 7, 2, 6): e(f'ds_write_b128 v{vKCW}, {p4(src[sh])} offset:{(sh-1)*KPITCH + 256 + 1024*i}')
CACC, EX, EKV, FB, EST = 32, 48, 56, 64, 192
PCHK = O('pchk', 2)
def epi_loads():
    r = []
    for ti in range(4):
        pi, tt = divmod(ti, 2)
        r.append(f'buffer_load_dwordx2 {p2(EX+2*ti)}, v{vX}, {srd(sWS)}, s{sEX+pi} offen offset:{512*tt} sc1')
        r.append(f'buffer_load_dwordx4 {p4(EST+8*ti)}, v{vST}, {srd(sWS)}, s{sES+pi} offen offset:{2048*tt} sc1')
        r.append(f'buffer_load_dwordx4 {p4(EST+8*ti+4)}, v{vST}, {srd(sWS)}, s{sES+pi} offen offset:{2048*tt+16} sc1')
    return r
def conv_role(tiles, nf, extra, pre, chk_wait):
    pairs = [(a, b - a, ti) for ti, b in enumerate(tiles) for a in range(b + 1)]
    pairs.sort(key=lambda p: (max(p[0], p[1]), p[0]))
    def reads(phi):
        st = phi & 1; r = []
        for i in range(nf):
            r.append(f'ds_read_b128 {p4(FB+64*st+4*i)}, v{vK} offset:{512*i + 64*phi}')
            r.append(f'ds_read_b128 {p4(FB+64*st+32+4*i)}, v{vU} offset:{512*(7-i) + 64*phi}')
        return r
    for r in reads(0): e(r)
    poll_issue(vF1B, 4, 224)
    first = set()
    for phi in range(8):
        st = phi & 1; mf = []
        for (a, c, ti) in pairs:
            ka = FB + 64*st + 4*a; uc = FB + 64*st + 32 + 4*c; ac = CACC + 4*ti
            cc = p4(ac) if ti in first else '0'
            first.add(ti)
            mf.append(f'v_mfma_f32_16x16x32_bf16 {p4(ac)}, {p4(ka)}, {p4(uc)}, {cc}')
        if phi < 7: fill = spread(18, reads(phi + 1), start=4 if phi == 0 else 0, per=2)
        else: fill = spread(18, [f'ds_read_b64 {p2(EKV+2*ti)}, v{vKV0+ti//2} offset:{512*(1-ti%2)}' for ti in range(4)], per=1)
        ex = list(extra.get(phi, []))
        if phi == PCHK + 1: ex = [[x] for x in epi_loads()] + ex
        lo = (nf if phi else nf + 4) if phi < 7 else 2
        if len(ex) > 18 - lo: lo = max(0, 18 - len(ex)//2 - 1)
        for k, g in enumerate(ex):
            fill.setdefault(lo + (k*(18 - lo))//len(ex), []).extend(g if isinstance(g, list) else [g])
        for x in pre.get(phi, []): e(x)
        if phi == 0:
            done = -1; nnew = 0
            for i, x in enumerate(mf):
                mx = max(pairs[i][0], pairs[i][1])
                if mx > done:
                    done = mx; e(f's_waitcnt lgkmcnt({min(15, 2*(nf-1-mx) + nnew)})')
                e(x)
                for y in fill.get(i, []):
                    e(y); nnew += y.startswith('ds_')
        else:
            e('s_waitcnt lgkmcnt(0)')
            weave(mf, fill)
        if phi == PCHK: poll(vF1B, 4, 224, issued=chk_wait)
def split(lst, n):
    return [lst[(len(lst)*i)//n:(len(lst)*(i+1))//n] for i in range(n)]
def epilogue(npost):
    T0 = 64; HP = 128
    e(f's_and_b32 s4, s{WV}, 1'); e('s_lshl_b32 s4, s4, 4'); e(f's_lshr_b32 s4, s{DPAIR}, s4'); e('s_lshl_b32 s4, s4, 16'); e('s_mov_b32 s5, s4')
    e(f's_waitcnt vmcnt({npost})')
    for ti in range(4):
        t = T0 + 16*ti
        unpack(t, t+1, EX+2*ti); unpack(t+2, t+3, EX+2*ti+1)
        for hh in range(2): e(f'v_pk_fma_f32 {p2(t+4+2*hh)}, {p2(t+2*hh)}, {p2(EST+8*ti+2*hh)}, {p2(EST+8*ti+4+2*hh)}')
    e('s_waitcnt lgkmcnt(0)')
    for ti in range(4):
        ac = CACC + 4*ti; t = T0 + 16*ti
        unpack(t+9, t+8, EKV+2*ti+1); unpack(t+11, t+10, EKV+2*ti)
        for hh in range(2): e(f'v_pk_fma_f32 {p2(ac+2*hh)}, {p2(t+8+2*hh)}, s[4:5], {p2(ac+2*hh)}')
        for hh in range(2): e(f'v_pk_fma_f32 {p2(t+4+2*hh)}, {p2(t+4+2*hh)}, {p2(ac+2*hh)}, {p2(t+2*hh)}')
        for hh in range(2): e(f'v_cvt_pk_bf16_f32 v{HP+2*ti+hh}, v{t+4+2*hh}, v{t+5+2*hh}')
        if ti & 1:
            b = HP + 2*(ti - 1)
            e(f'v_permlane16_swap_b32 v{b}, v{b+2}'); e(f'v_permlane16_swap_b32 v{b+1}, v{b+3}')
            e(f'buffer_store_dwordx4 {p4(b)}, v{vHBo}, {srd(sWS)}, s{sEH+ti//2} offen sc1')
w2_raddr(sW2L)
e(f's_cmp_ge_u32 s{WV}, 2'); e('s_cbranch_scc1 L_ROLEA')
e('s_waitcnt vmcnt(4)')
arrive()
poll(vF1, 1, 29)
stamp('go1')
e(f's_mov_b32 m0, s{sUB}')
for i in range(4): e(f'buffer_load_dwordx4 v{vL16}, {srd(sWS)}, s34 offen offset:{1024*i} sc1 lds')
kcopies()
e('s_waitcnt vmcnt(0) lgkmcnt(0)')
e('s_barrier')
stamp('u_landed')
NB2 = O('nb2', NB1)
d1 = split(w2_dma_l(NB1, sW2L), PCHK + 1); r1 = split(w2_read_l(0, NB1), 2); d2 = split(w2_dma_l(NB2, sW2L), 2)
extra = {p: d1[p] for p in range(PCHK + 1)}
extra[4] = r1[0]; extra[5] = r1[1]; extra[6] = d2[0]; extra[7] = d2[1]
conv_role([2, 3, 4, 5], 6, extra, {4: ['s_waitcnt vmcnt(12)']}, 2*NB1)
stamp('conv_done')
epilogue(2*NB2)
stamp('h_stored')
e('s_waitcnt vmcnt(2)')
emit(w2_read_l(NB1, NB2))
e('s_branch L_CONVDONE')
e('L_ROLEA:')
NE = O('ne', 8)
da = w2_dma_l(NA1, sW2L)
GT = O('gt', 3)
NG = 0
if GT:
    e(f's_mul_i32 s4, s2, {56*128}'); e(f's_and_b32 s5, s{WV}, 1'); e(f's_mul_i32 s5, s5, {28*128}'); e('s_add_u32 s4, s4, s5')
    e('v_lshlrev_b32 v29, 7, v1')
    e('s_mov_b64 exec, 0xfffffff')
    if GT & 2: e(f'buffer_load_dword v254, v29, {srd(sW2)}, s4 offen'); NG += 1
    if GT & 1: e(f'buffer_load_dword v253, v29, {srd(sW1)}, s4 offen'); NG += 1
    e('s_mov_b64 exec, -1')
emit(da[:NE])
e(f's_waitcnt vmcnt({4 + NE + NG})')
arrive()
e(f's_waitcnt vmcnt({NE + NG})')
kcopies()
emit(da[NE:])
e('s_waitcnt lgkmcnt(0)')
e('s_barrier')
NA2 = O('na2', NA1)
r1 = split(w2_read_l(0, NA1), 2); d2 = split(w2_dma_l(NA2, sW2L), 3)
PA = O('pa', 2)
conv_role([0, 1, 6, 7], 8, {PA: r1[0], PA + 2 if PA + 1 == PCHK + 1 else PA + 1: r1[1], 5: d2[0], 6: d2[1], 7: d2[2]}, {PA: ['s_waitcnt vmcnt(1)']}, 0)
epilogue(2*NA2)
e('s_waitcnt vmcnt(2)')
emit(w2_read_l(NA1, NA2))
e('L_CONVDONE:')
ACC1, S1, S2, ONES, FR, C1 = 64, 120, 128, 136, 140, 212
vWa, vWb, vH0, vH1, vHD = 8, 9, 10, 11, 12
e('v_lshrrev_b32 v13, 2, v1'); e('v_and_b32 v15, 3, v1')
e('s_movk_i32 s4, 224'); e(f'v_mul_u32_u24 v{vWa}, s4, v13'); e(f'v_lshl_add_u32 v{vWa}, v15, 3, v{vWa}'); e(f'v_add_u32 v{vWb}, {8*7168}, v{vWa}')
e(f'v_lshlrev_b32 v{vH0}, 6, v13'); e(f'v_lshl_add_u32 v{vH0}, v15, 3, v{vH0}'); e('v_bfe_u32 v15, v1, 4, 1'); e('v_lshlrev_b32 v15, 5, v15'); e(f'v_xor_b32 v{vH0}, v{vH0}, v15')
e(f'v_add_u32 v{vH0}, s{sRING}, v{vH0}'); e(f'v_xor_b32 v{vH1}, 32, v{vH0}')
e(f'v_xor_b32 v{vHD}, v{vL16}, v15')
for r in range(4): e(f'v_mov_b32 v{ONES+r}, 0x3f803f80')
e(f'v_add_u32 v13, s{sW1L}, v{vWa}'); e(f'v_add_u32 v14, s{sW1L}, v{vWb}')
e('v_lshlrev_b32 v16, 7, v0'); e(f'v_add_u32 v16, {L.F2}, v16')
e('v_and_b32 v17, 48, v1'); e(f'v_add_u32 v17, {C1S}, v17'); e(f's_mul_i32 s4, s{WV}, 448'); e('v_add_u32 v18, s4, v17')
e('s_waitcnt vmcnt(0) lgkmcnt(0)')
e('s_barrier')
wg_flag(L.F2, 0)
stamp('flag2')
for q in range(4):
    e(f's_add_u32 s4, s{sW1S}, {4*q*32*3584}')
    for i in range(7):
        e(f's_add_u32 m0, s{sW1L}, {4*q*7168 + 1024*i}')
        e(f'buffer_load_dwordx4 v{W1O+i}, {srd(sW1)}, s4 offen lds')
NR2 = min(O('nr2', 4), 28 - NA1 - NA2)
emit(w2_dma_l(NR2, sRING))
poll_issue(16, 1, 29)
def c1_part(qs, first):
    for n, q in enumerate(qs):
        b = FR + 36*(n & 1)
        for t in range(7):
            for x in range(2): e(f'ds_read_b64_tr_b16 {p2(b+4*t+2*x)}, v{13 + q//2} offset:{4*7168*(q%2) + 3584*x + 32*t}')
    for n, q in enumerate(qs):
        b = FR + 36*(n & 1)
        e(f's_waitcnt lgkmcnt({14*(len(qs)-1-n)})')
        for t in range(7):
            c = '0' if (first and n == 0) else p4(C1+4*t)
            e(f'v_mfma_f32_16x16x32_bf16 {p4(C1+4*t)}, {p4(b+4*t)}, {p4(ONES)}, {c}')
e(f's_waitcnt vmcnt({14 + 2*NR2 + 1})')
c1_part([0, 1], True)
e(f's_waitcnt vmcnt({2*NR2 + 1})')
stamp('w1_landed')
c1_part([2, 3], False)
e('s_mov_b32 exec_lo, 0x00010001'); e('s_mov_b32 exec_hi, 0x00010001')
for t in range(7): e(f'ds_write_b128 v18, {p4(C1+4*t)} offset:{64*t}')
e('s_mov_b64 exec, -1')
if NR2:
    w2_raddr(sRING)
    e('s_waitcnt vmcnt(1)')
    e(f's_cmp_ge_u32 s{WV}, 2'); e('s_cbranch_scc1 L_R2A')
    emit(w2_read_l(NB1 + NB2, NR2)); e('s_branch L_R2D')
    e('L_R2A:'); emit(w2_read_l(NA1 + NA2, NR2)); e('L_R2D:')
poll(16, 1, 29, issued=0)
e('s_waitcnt lgkmcnt(0)')
e('s_barrier')
stamp('go2')
def h_dma(i):
    return [f's_add_u32 m0, s{sRING}, {2048*(i % NSLOT)}', f's_movk_i32 s9, {2048*i}',
            f'buffer_load_dwordx4 v{vHD}, {srd(sHB)}, s9 offen sc1 lds',
            f'buffer_load_dwordx4 v{vHD}, {srd(sHB)}, s9 offen offset:1024 sc1 lds']
LH = 4
for i in range(LH): emit(h_dma(i))
for w in range(4):
    dst = C1 if w == 0 else FR + 28*((w-1) % 2)
    for t in range(7): e(f'ds_read_b128 {p4(dst+4*t)}, v17 offset:{448*w + 64*t}')
    if w >= 1:
        e('s_waitcnt lgkmcnt(7)')
        if w >= 2:
            src = FR + 28*((w-2) % 2)
            for r in range(0, 28, 2): e(f'v_pk_add_f32 {p2(C1+r)}, {p2(C1+r)}, {p2(src+r)}')
e('s_waitcnt lgkmcnt(0)')
for r in range(0, 28, 2): e(f'v_pk_add_f32 {p2(C1+r)}, {p2(C1+r)}, {p2(FR+r)}')
e(f's_and_b32 s8, s{CS}, 7')
def g1_w(i):
    st = i & 1
    return [f'ds_read_b64_tr_b16 {p2(FR+36*st+8+4*t+2*x)}, v{vWa if i < 8 else vWb} offset:{7168*(i%8) + 3584*x + 32*t}' for t in range(7) for x in range(2)]
def g1_h(i):
    st = i & 1
    return [f'ds_read_b64_tr_b16 {p2(FR+36*st+4*s+2*x)}, v{vH0+s} offset:{2048*(i % NSLOT) + 1024*x}' for s in range(2) for x in range(2)]
emit(g1_w(0))
e(f's_waitcnt vmcnt({2*LH - 2})')
emit(g1_h(0))
OOL = []
for i in range(16):
    b = FR + 36*(i & 1); mf = []
    for t in range(7):
        for s in range(2):
            ac = ACC1 + 8*t + 4*s
            mf.append(f'v_mfma_f32_16x16x32_bf16 {p4(ac)}, {p4(b+8+4*t)}, {p4(b+4*s)}, {"0" if i == 0 else p4(ac)}')
    for s in range(2):
        mf.append(f'v_mfma_f32_16x16x32_bf16 {p4(S1+4*s)}, {p4(ONES)}, {p4(b+4*s)}, {"0" if i == 0 else p4(S1+4*s)}')
    fill = {}
    if i < 15:
        fill[0] = [f's_waitcnt vmcnt({2*(min(i + LH, 16) - i - 2)})'] + g1_h(i + 1)[:1]
        spread(16, g1_h(i + 1)[1:] + g1_w(i + 1), start=1, per=2, fill=fill)
    if i + LH < 16:
        d = h_dma(i + LH)
        fill.setdefault(10, []).extend(d[:2]); fill.setdefault(11, []).extend(d[2:3]); fill.setdefault(13, []).extend(d[3:])
    fill.setdefault(14, []).append(f's_cmp_eq_u32 s8, {i//2}')
    fill.setdefault(15, []).extend([f's_cbranch_scc1 L_S2_{i}', f'L_S2R_{i}:'])
    OOL.append((i, b))
    e('s_waitcnt lgkmcnt(0)')
    weave(mf, fill)
stamp('g1_done')
e(f's_lshl_b32 s8, s{RB}, 2'); e(f's_add_u32 s8, s8, s{WV}'); e('s_mul_i32 s4, s8, 112'); e(f's_mul_i32 s5, s{CS}, 7'); e('s_add_u32 s4, s4, s5')
e('s_lshl_b32 s4, s4, 10'); e(f's_add_u32 s10, s4, {L.H1F}'); e('s_add_u32 s11, s10, 4096')
for s in range(2): e(f'v_mul_f32 v{20+s}, 0x3b000000, v{S1+4*s}')
for s in range(2): bf16r(18 + s, 20 + s)
for t in range(7):
    o = FR + 4*t
    for s in range(2):
        ac = ACC1 + 8*t + 4*s
        sel = f'op_sel:[0,{s},0] op_sel_hi:[1,{s},1] neg_lo:[0,1,0] neg_hi:[0,1,0]'
        for hh in range(2): e(f'v_pk_fma_f32 {p2(ac+2*hh)}, {p2(C1+4*t+2*hh)}, v[18:19], {p2(ac+2*hh)} {sel}')
    for s in range(2):
        ac = ACC1 + 8*t + 4*s
        for hh in range(2): e(f'v_cvt_pk_bf16_f32 v{o+2*s+hh}, v{ac+2*hh}, v{ac+2*hh+1}')
    for r in range(4): e(f'v_pk_max_i16 v{o+r}, v{o+r}, 0')
    e(f'v_permlane16_swap_b32 v{o}, v{o+2}'); e(f'v_permlane16_swap_b32 v{o+1}, v{o+3}')
    e(f'buffer_store_dwordx4 {p4(o)}, v{vL16}, {srd(sWS)}, s{10 + t//4} offen offset:{1024*(t%4)} sc1')
e('s_mov_b32 s28, 0x22222222'); e('s_mov_b32 s29, s28'); e('s_mov_b32 s30, 0x44444444'); e('s_mov_b32 s31, s30'); e('s_mov_b32 s32, 0x88888888'); e('s_mov_b32 s33, s32')
e(f's_bitcmp1_b32 s{CS}, 3'); e('s_cselect_b64 vcc, -1, 0')
for r in range(4): e(f'v_cndmask_b32 v{S2+r}, v{S2+r}, v{S2+4+r}, vcc')
e(f'v_cndmask_b32 v22, v{S1}, v{S1+4}, vcc'); e('v_cndmask_b32 v23, v20, v21, vcc')
e(f'v_cndmask_b32 v24, v{S2}, v{S2+1}, s[28:29]'); e('v_mul_f32 v22, 0xbe000000, v22')
e(f'v_cndmask_b32 v24, v24, v{S2+2}, s[30:31]'); e('v_and_b32 v13, 15, v1')
e(f'v_cndmask_b32 v24, v24, v{S2+3}, s[32:33]'); e('v_lshlrev_b32 v13, 2, v13')
e('v_fmac_f32 v24, v22, v23')
e('s_lshl_b32 s9, s8, 10'); e(f's_and_b32 s5, s{CS}, 7'); e('s_lshl_b32 s5, s5, 7'); e('s_add_u32 s9, s9, s5')
e(f's_lshr_b32 s5, s{CS}, 3'); e('s_lshl_b32 s5, s5, 6'); e('s_add_u32 s9, s9, s5'); e(f's_add_u32 s9, s9, {L.PVAR}')
e('s_mov_b32 exec_lo, 0x00F0000F'); e('s_mov_b32 exec_hi, 0xF0000F00')
e(f'buffer_store_dword v24, v13, {srd(sWS)}, s9 offen sc1')
e('s_mov_b64 exec, -1')
e(f's_lshl_b32 s12, s{RT}, 16'); e(f's_lshl_b32 s5, s{CT}, 12'); e('s_add_u32 s12, s12, s5')
e(f's_and_b32 s5, s{WV}, 1'); e('s_lshl_b32 s5, s5, 11'); e('s_add_u32 s12, s12, s5'); e(f's_lshr_b32 s5, s{WV}, 1'); e('s_lshl_b32 s5, s5, 10'); e('s_add_u32 s12, s12, s5')
e(f's_add_u32 s12, s12, {L.HB}'); e('s_add_u32 s9, s12, 32768 - 1024')
e(f's_mov_b32 m0, s{sRING}')
e(f'buffer_load_dwordx4 v{vL16}, {srd(sWS)}, s12 offen sc1 lds')
e(f'buffer_load_dwordx4 v{vL16}, {srd(sWS)}, s9 offen offset:1024 sc1 lds')
NB3 = 28 - NB1 - NB2 - NR2; NA3 = 28 - NA1 - NA2 - NR2
assert NA3 == 0 or NA3 <= 4
n3a = min(NB3, 4); n3b = NB3 - n3a; assert n3b <= 8
e(f's_add_u32 s34, s{sRING}, 2048'); e(f's_lshl_b32 s35, s{WV}, 14')
e(f's_lshl_b32 s4, s{RB}, 4'); e(f's_add_u32 s4, s4, s{CS}'); e('s_lshl_b32 s4, s4, 2'); e(f's_add_u32 s4, s4, s{WV}'); e('s_lshl_b32 s4, s4, 7'); e(f's_add_u32 s4, s4, {L.F3}')
e(f's_lshr_b32 s11, s{RT}, 1'); e('s_lshl_b32 s11, s11, 6'); e(f's_lshl_b32 s5, s{WV}, 4'); e('s_add_u32 s11, s11, s5')
e(f's_and_b32 s5, s{RT}, 1'); e('s_lshl_b32 s5, s5, 1'); e('s_add_u32 s11, s11, s5'); e('s_lshl_b32 s11, s11, 7'); e(f's_add_u32 s11, s11, {L.F3}')
e('v_and_b32 v24, 3, v1'); e('v_lshlrev_b32 v24, 9, v24'); e('v_bfe_u32 v22, v1, 2, 1'); e('v_lshl_add_u32 v24, v22, 7, v24'); e('v_add_u32 v24, s11, v24')
e('v_lshlrev_b32 v23, 7, v1')
def flag3_and_touch(n):
    e(f's_waitcnt vmcnt({n})')
    flag_store(4)
    if O('h1t', 1):
        e('s_mov_b32 exec_hi, 0xffffff')
        e(f'buffer_load_dword v7, v23, {srd(sWS)}, s10 offen sc1')
        e('s_mov_b64 exec, -1')
NH = O('h1t', 1)
e(f's_cmp_ge_u32 s{WV}, 2'); e('s_cbranch_scc1 L_F3A')
emit(w2_dma_l(n3a, 34))
flag3_and_touch(2 + 2*n3a)
stamp('flag3')
e('s_barrier')
emit(w2_dma_l(n3b, 35))
if n3a:
    w2_raddr(34); e(f's_waitcnt vmcnt({NH + 2*n3b})'); emit(w2_read_l(28 - NB3, n3a))
if n3b:
    w2_raddr(35, 29); e('s_waitcnt vmcnt(0)'); emit(w2_read_l(28 - n3b, n3b, 29))
e('s_branch L_F3D')
e('L_F3A:')
emit(w2_dma_l(NA3, 34))
flag3_and_touch(2 + 2*NA3)
e('s_barrier')
if NA3:
    w2_raddr(34); e(f's_waitcnt vmcnt({NH})'); emit(w2_read_l(28 - NA3, NA3))
e('L_F3D:')
stamp('w2_done')
e(f's_or_b32 s4, s2, s{WV}'); e('s_cmp_lg_u32 s4, 0'); e('s_cbranch_scc1 L_NE')
e(f's_mov_b32 s4, {L.EPOCH}')
flag_store(4)
e('L_NE:')
e(f's_mul_i32 s4, s{RT}, {2*112*1024}'); e(f's_mul_i32 s5, s{WV}, {28*1024}'); e(f's_add_u32 s5, s5, {L.H1F}'); e('s_add_u32 s32, s4, s5'); e(f's_add_u32 s33, s32, {112*1024}')
e('v_lshrrev_b32 v20, 5, v1'); e('v_lshlrev_b32 v20, 10, v20'); e('v_and_b32 v21, 15, v1'); e('v_lshl_add_u32 v20, v21, 2, v20')
e('v_bfe_u32 v22, v1, 4, 1'); e('v_lshl_add_u32 v20, v22, 8, v20')
e(f's_lshl_b32 s35, s{RT}, 11'); e(f's_and_b32 s5, s{WV}, 1'); e('s_lshl_b32 s5, s5, 9'); e('s_add_u32 s35, s35, s5')
e(f's_lshr_b32 s5, s{WV}, 1'); e('s_lshl_b32 s5, s5, 6'); e('s_add_u32 s35, s35, s5'); e(f's_add_u32 s35, s35, {L.PVAR}')
e(f's_lshl_b32 s4, s{WV}, 14'); e(f'v_add_u32 v8, s4, v{vL16}')
e(f's_lshl_b32 s4, s{WV}, 8'); e(f's_add_u32 s4, s4, {PVS}'); e('v_lshl_add_u32 v9, v1, 2, s4')
e(f'v_lshlrev_b32 v11, 2, v21'); e('v_lshl_add_u32 v11, v22, 9, v11'); e(f'v_add_u32 v11, {PVS}, v11')
e(f's_and_b32 s4, s{WV}, 1'); e('s_lshl_b32 s4, s4, 12'); e(f's_lshr_b32 s5, s{WV}, 1'); e('s_lshl_b32 s5, s5, 11'); e('s_add_u32 s4, s4, s5'); e(f'v_add_u32 v12, s4, v{vL16}')
e('v_lshrrev_b32 v13, 5, v1'); e('v_lshlrev_b32 v13, 2, v13'); e('v_bfe_u32 v14, v1, 2, 2'); e('v_add_u32 v13, v13, v14'); e('v_lshlrev_b32 v13, 6, v13')
e('v_lshl_add_u32 v13, v22, 5, v13'); e('v_and_b32 v14, 3, v1'); e('v_lshl_add_u32 v13, v14, 3, v13'); e(f'v_add_u32 v13, s{sRING}, v13')
e('v_and_b32 v10, 31, v1'); e('v_lshlrev_b32 v10, 10, v10'); e('v_lshrrev_b32 v14, 5, v1'); e('v_lshl_add_u32 v10, v14, 4, v10')
e(f's_lshl_b32 s4, s{RT}, 16'); e(f's_lshl_b32 s5, s{CT}, 7'); e('s_add_u32 s4, s4, s5'); e(f's_and_b32 s5, s{WV}, 1'); e('s_lshl_b32 s5, s5, 6'); e('s_add_u32 s4, s4, s5')
e(f's_lshr_b32 s5, s{WV}, 1'); e('s_lshl_b32 s5, s5, 5'); e('s_add_u32 s38, s4, s5'); e('s_add_u32 s39, s38, 32768')
e('s_waitcnt lgkmcnt(0)')
poll(24, 1, 31)
stamp('go3')
LA = O('la', 8); NB = LA + 2; BF = 32
e(f'buffer_load_dword v22, v20, {srd(sWS)}, s35 offen sc1'); e(f'buffer_load_dword v23, v20, {srd(sWS)}, s35 offen offset:128 sc1')
def g2_load(i):
    p, ks = divmod(i, 28); r = BF + 4*(i % NB); x = []
    if ks % 4 == 0: x.append(f's_add_u32 s37, s{32+p}, {1024*ks}')
    x.append(f'buffer_load_dwordx4 {p4(r)}, v{vL16}, {srd(sWS)}, s37 offen offset:{1024*(ks%4)} sc1')
    return x
for i in range(LA): emit(g2_load(i))
RU = 160; PR = 96; RS = 14; OP = 140
for p in range(2):
    for q in range(2): e(f'ds_read_b64_tr_b16 {p2(RU+16+4*p+2*q)}, v13 offset:{1024*p + 512*q}')
def fin_reads(p): return [f'ds_read_b128 {p4(PR+16*q+4*w)}, v12 offset:{16384*w + 8192*p + 1024*q}' for q in range(2) for w in range(4)]
def fin_math(p):
    r = []
    for q in range(2):
        b = PR + 16*q
        if q == 0: r.append('s_waitcnt lgkmcnt(4)')
        else: r.append('s_waitcnt lgkmcnt(0)')
        for hh in range(2):
            r.append(f'v_pk_add_f32 {p2(b+2*hh)}, {p2(b+2*hh)}, {p2(b+4+2*hh)}'); r.append(f'v_pk_add_f32 {p2(b+8+2*hh)}, {p2(b+8+2*hh)}, {p2(b+12+2*hh)}')
        for hh in range(2): r.append(f'v_pk_add_f32 {p2(b+2*hh)}, {p2(b+2*hh)}, {p2(b+8+2*hh)}')
        for hh in range(2): r.append(f'v_pk_fma_f32 {p2(b+2*hh)}, {p2(b+2*hh)}, {p2(RS)}, {p2(RU+8*p+4*q+2*hh)} op_sel:[0,{p},0] op_sel_hi:[1,{p},1]')
        for hh in range(2): r.append(f'v_cvt_pk_bf16_f32 v{OP+4*p+2*q+hh}, v{b+2*hh}, v{b+2*hh+1}')
    o = OP + 4*p
    r += [f'v_permlane32_swap_b32 v{o}, v{o+2}', f'v_permlane32_swap_b32 v{o+1}, v{o+3}']
    return r
OUTPOL = {0: '', 1: ' sc1', 2: ' nt'}[O('outpol', 0)]
def fin_store(p): return f'buffer_store_dwordx4 {p4(OP+4*p)}, v10, {srd(sOUT)}, s{38+p} offen{OUTPOL}'
side = {}
side[0] = ['v_add_f32 v22, v22, v23', 'ds_write_b32 v9, v22']
side[2] = ['s_waitcnt lgkmcnt(0)'] + sum([unpack_l(RU+4*k, RU+4*k+1, RU+16+2*k) + unpack_l(RU+4*k+2, RU+4*k+3, RU+17+2*k) for k in range(2)], [])
side[3] = sum([unpack_l(RU+4*k, RU+4*k+1, RU+16+2*k) + unpack_l(RU+4*k+2, RU+4*k+3, RU+17+2*k) for k in range(2, 4)], [])
for q in range(8): side[29 + q] = [f'ds_write_b128 v8, a[{224+4*q}:{227+4*q}] offset:{1024*q}']
side[38] = ['s_waitcnt lgkmcnt(0)', 's_barrier',
            'ds_read2_b32 v[16:17], v11 offset0:0 offset1:16', 'ds_read2_b32 v[18:19], v11 offset0:64 offset1:80',
            'ds_read2_b32 v[20:21], v11 offset0:32 offset1:48', 'ds_read2_b32 v[22:23], v11 offset0:96 offset1:112']
side[39] = fin_reads(0)[:4]; side[40] = fin_reads(0)[4:]
rs = ['s_waitcnt lgkmcnt(8)', 'v_add_f32 v16, v16, v17', 'v_add_f32 v18, v18, v19', 'v_add_f32 v20, v20, v21', 'v_add_f32 v22, v22, v23',
      f'v_add_f32 v{RS}, v16, v18', f'v_add_f32 v{RS+1}, v20, v22', f'v_mul_f32 v{RS}, 0x3b000000, v{RS}', f'v_mul_f32 v{RS+1}, 0x3b000000, v{RS+1}',
      f'v_max_f32 v{RS}, 0, v{RS}', f'v_max_f32 v{RS+1}, 0, v{RS+1}'] + rstd_l([RS, RS+1]) + fin_math(0)
k = 41
while rs:
    side[k] = rs[:6]; rs = rs[6:]; k += 1
assert k <= 54
STORE_AT = k
issued = LA; extra_vm = 0
for i in range(56):
    p, ks = divmod(i, 28); r = BF + 4*(i % NB)
    young = issued - i - 1 + (1 if (extra_vm and i < ST_ISSUED) else 0)
    e(f's_waitcnt vmcnt({young})')
    sd = list(side.get(i, []))
    for dt in range(2):
        acc = f'a[{224+16*dt}:{239+16*dt}]' if p == 0 else f'v[{224+16*dt}:{239+16*dt}]'
        a = 8*ks + 4*dt
        e(f'v_mfma_f32_32x32x16_bf16 {acc}, a[{a}:{a+3}], {p4(r)}, {"0" if ks == 0 else acc}')
        if dt == 0:
            if issued < 56: emit(g2_load(issued)); issued += 1
            h = (len(sd) + 1)//2 if 's_barrier' not in sd else 0
            emit(sd[:h]); sd = sd[h:]
    emit(sd)
    if i == STORE_AT:
        e(fin_store(0)); extra_vm = 1; ST_ISSUED = issued
stamp('g2_done')
for q in range(8): e(f'ds_write_b128 v8, v[{224+4*q}:{227+4*q}] offset:{8192 + 1024*q}')
e('s_waitcnt lgkmcnt(0)')
e('s_barrier')
emit(fin_reads(1)); emit(fin_math(1)); e(fin_store(1))
if O('delay', 0):
    e(f's_mov_b32 s4, {O("delay", 0)}')
    e('L_DLY:')
    for _ in range(16): e('v_add_f32 v2, v2, v2')
    e('s_sub_u32 s4, s4, 1'); e('s_cmp_lg_u32 s4, 0'); e('s_cbranch_scc1 L_DLY')
if STAMPS:
    stamp('end')
    e('s_waitcnt vmcnt(0)')
    e('s_memrealtime s[72:73]')
    e(f's_cmp_lg_u32 s{WV}, 0'); e('s_cbranch_scc1 L_END')
    e('s_waitcnt lgkmcnt(0)')
    if O('dbg', 0):
        e('s_load_dwordx2 s[28:29], s[0:1], 80'); e('s_mov_b32 s30, 256'); e('s_mov_b32 s31, 0x20000'); e('s_waitcnt lgkmcnt(0)')
        e('s_mov_b64 exec, 1')
        e('v_mov_b32 v2, 0'); e('v_mov_b32 v3, s72'); e('s_not_b32 s4, s70'); e('v_mov_b32 v4, s4')
        e('buffer_atomic_umax v3, v2, s[28:31], 0 offen'); e('buffer_atomic_umax v4, v2, s[28:31], 0 offen offset:4')
        for i in range(13):
            e(f's_sub_u32 s4, s{76+2*i}, s74'); e(f'v_mov_b32 v{8+i}, s4')
            e(f'buffer_atomic_umax v{8+i}, v2, s[28:31], 0 offen offset:{8+4*i}')
        e('s_endpgm')
    e('s_lshl_b32 s4, s2, 7'); e(f's_add_u32 s4, s4, {L.STAMP}')
    e('v_mov_b32 v2, 0')
    e('s_mov_b64 exec, 1')
    for i in range(16):
        e(f'v_mov_b32 v4, s{70+2*i}'); e(f'v_mov_b32 v5, s{71+2*i}')
        e(f'buffer_store_dwordx2 v[4:5], v2, {srd(sWS)}, s4 offen offset:{8*i}')
        e('s_nop 1')
e('L_END:')
e('s_endpgm')
for i, b in OOL:
    e(f'L_S2_{i}:')
    for s in range(2):
        e(f'v_mfma_f32_16x16x32_bf16 {p4(S2+4*s)}, {p4(b+4*s)}, {p4(b+4*s)}, {"0" if i % 2 == 0 else p4(S2+4*s)}')
    e(f's_branch L_S2R_{i}')

hdr = f'''; generated by gen10.py (own generator script)
; @launch grid=(256,1,1) block=(256,1,1) lds=163840
.amdgcn_target "amdgcn-amd-amdhsa--gfx950"
.text
.globl {NAME}_kernel
.p2align 8
.type {NAME}_kernel,@function
'''
ftr = f'''.fill 4096, 4, 0xBF800000
.section .rodata,"a"
.p2align 6
.amdhsa_kernel {NAME}_kernel
  .amdhsa_next_free_vgpr 512
  .amdhsa_next_free_sgpr 102
  .amdhsa_accum_offset 256
  .amdhsa_group_segment_fixed_size 0
  .amdhsa_kernarg_size 96
  .amdhsa_user_sgpr_count 2
  .amdhsa_user_sgpr_kernarg_segment_ptr 1
  .amdhsa_system_sgpr_workgroup_id_x 1
  .amdhsa_float_denorm_mode_32 3
.end_amdhsa_kernel
'''
open(OUT, 'w').write(hdr + A.text() + ftr)
if STAMPS: open('stamps.txt', 'w').write(' '.join(st_used))
print('stamps', st_used, 'instructions', sum(1 for i in A.ins if i.states))
```
